```python
import torch

def _softmax(x, axis=-1):
    return torch.softmax(x, dim=axis)
def _gelu(x):
    return torch.nn.functional.gelu(x, approximate="tanh")
def _silu(x):
    return torch.nn.functional.silu(x)
def _sigmoid(x):
    return torch.sigmoid(x)
def _layernorm(x, axis=-1, eps=1e-5):
    m = x.mean(dim=axis, keepdim=True)
    v = x.var(dim=axis, keepdim=True, unbiased=False)
    return (x - m) / torch.sqrt(v + eps)
def _scatter_add(tgt, idx, src, axis=0):
    return tgt.clone().index_add_(axis, idx, src)
def _segment_sum(src, seg, n):
    out = torch.zeros((n,) + src.shape[1:], dtype=src.dtype)
    return out.index_add_(0, seg, src)
def _pad(x, pw):
    flat = tuple(v for pair in reversed(pw) for v in pair)
    return torch.nn.functional.pad(x, flat)

kernel_name = 'parallel_sum__linear_kernel_hedgehog__dense_activation_relu__prompt'

def setup_inputs():

    _w = (lambda a: (lambda t: t.to(torch.bfloat16) if t.is_floating_point() else t)(torch.as_tensor(a)))
    def _A_setup():
        B, S, D, H = 1, 2048, 576, 32
        Dh = D // H
        return {
            "x": _w((lambda *s: torch.randn(*s, dtype=torch.bfloat16) * 0.05)(B, S, D)),
            "wqkv": _w((lambda *s: torch.randn(*s, dtype=torch.bfloat16) * 0.8)(D, 3 * D)),
            "w_phi": _w((lambda *s: torch.randn(*s, dtype=torch.bfloat16) * 0.8)(H, Dh, Dh) * (Dh ** -0.5)),
            "wo": _w((lambda *s: torch.randn(*s, dtype=torch.bfloat16) * 0.2)(D, D)),
        }
    _A_in = _A_setup()

    def _B_setup():
        B, S, D, Dff = 1, 2048, 576, 4608
        return {
            "x": _w((lambda *s: torch.randn(*s, dtype=torch.bfloat16) * 0.05)(B, S, D)),
            "w1": _w((lambda *s: torch.randn(*s, dtype=torch.bfloat16) * 0.05)(D, Dff)),
            "w2": _w((lambda *s: torch.randn(*s, dtype=torch.bfloat16) * 0.05)(Dff, D)),
        }
    _B_in = _B_setup()

    return {
        "A_x": _A_in["x"],
        "A_wqkv": _A_in["wqkv"],
        "A_w_phi": _A_in["w_phi"],
        "A_wo": _A_in["wo"],
        "B_x": _B_in["x"],
        "B_w1": _B_in["w1"],
        "B_w2": _B_in["w2"],
    }

def reference(A_x, A_wqkv, A_w_phi, A_wo, B_x, B_w1, B_w2):
    def _A_ref(x, wqkv, w_phi, wo):
        B, S, D = x.shape
        H = 32; Dh = D // H
        qkv = (lambda x, *d: x.permute(*d))((x @ wqkv).reshape(B, S, 3, H, Dh), 2, 0, 3, 1, 4)
        q, k, v = qkv[0], qkv[1], qkv[2]
        pq = torch.einsum("bhsd,hdf->bhsf", q, w_phi)
        pk = torch.einsum("bhsd,hdf->bhsf", k, w_phi)
        phi_q = torch.concatenate([_softmax(pq, axis=-1), _softmax(-pq, axis=-1)], axis=-1)
        phi_k = torch.concatenate([_softmax(pk, axis=-1), _softmax(-pk, axis=-1)], axis=-1)
        kv = torch.einsum("bhsf,bhsd->bhfd", phi_k, v)
        z  = torch.einsum("bhsf->bhf", phi_k)
        num = torch.einsum("bhqf,bhfd->bhqd", phi_q, kv)
        den = torch.einsum("bhqf,bhf->bhq", phi_q, z)[..., None] + 1e-6
        o = num / den
        return (lambda x, *d: x.permute(*d))(o, 0, 2, 1, 3).reshape(B, S, D) @ wo

    def _B_ref(x, w1, w2):
        h = torch.einsum("bsd,df->bsf", x, w1)
        zero = torch.zeros_like(h)
        h = torch.maximum(h, zero)
        return torch.einsum("bsf,fd->bsd", h, w2)

    x = A_x
    xn = _layernorm(x, axis=-1)
    return x + _A_ref(xn, A_wqkv, A_w_phi, A_wo) + _B_ref(xn, B_w1, B_w2)
```

```python
NAME = 'parallel_sum__linear_kernel_hedgehog__dense_activation_relu__prompt'


class R:
    __slots__ = ('k', 'i', 'n')

    def __init__(self, k, i, n=1):
        self.k, self.i, self.n = k, i, n

    def __str__(self):
        if self.n == 1:
            return f'{self.k}{self.i}'
        return f'{self.k}[{self.i}:{self.i + self.n - 1}]'

    __repr__ = __str__

    def __getitem__(self, x):
        if isinstance(x, slice):
            a, b, _ = x.indices(self.n)
            return R(self.k, self.i + a, b - a)
        assert 0 <= x < self.n, (x, self.n)
        return R(self.k, self.i + x, 1)

    def keys(self):
        return [(self.k, self.i + j) for j in range(self.n)]


def V(i, n=1): return R('v', i, n)
def A(i, n=1): return R('a', i, n)
def S(i, n=1): return R('s', i, n)


def _keys(lst):
    out = []
    for x in lst:
        if isinstance(x, R):
            out += x.keys()
        elif isinstance(x, str):
            if x == 'vcc':
                out += [('vcc', 0)]
            elif x in ('m0', 'exec', 'scc'):
                out += [(x, 0)]
    return out


class Emitter:
    def __init__(self):
        self.lines = []
        self.slot = 0
        self.w_valu = {}
        self.w_trans = {}
        self.w_mfma = {}
        self.c_mfma = {}
        self.st_data = {}
        self.w_m0 = -100
        self.vmq = []
        self.lgq = []
        self.nops = 0
        self.uid = 0
        self.bytes = 0
        self.dry = False
        self.pr = []
        self.w_dot = {}
        self.ninst = 0

    def raw(self, text):
        self.lines.append('    ' + text)

    def probe(self, fn):
        self.dry, self.pr = True, []
        try:
            fn()
        finally:
            self.dry = False
        return self.pr

    def comment(self, text):
        if not self.dry:
            self.lines.append('    ; ' + text)

    def label(self, name):
        if not self.dry:
            self.lines.append(name + ':')

    def newlabel(self, base='L'):
        self.uid += 1
        return f'{base}_{self.uid}'

    def nop(self, n):
        if self.dry:
            self.pr.append(('other', 0, 's_nop'))
            return
        while n > 0:
            k = min(n, 16)
            self.raw(f's_nop {k - 1}')
            self.slot += k
            self.nops += k
            n -= k

    def fence_all(self):
        self.nop(16)
        self.nop(4)

    def ins(self, text, w=(), r=(), cls='valu', cread=None, passes=0, stdata=None):
        wk, rk = _keys(w), _keys(r)
        need = self.slot
        p = self.slot

        def req(q, ws):
            nonlocal need
            need = max(need, q + 1 + ws)

        ismfma = cls == 'mfma'
        isvalu = cls in ('valu', 'trans', 'perm', 'rdlane')
        ck = set(_keys([cread])) if cread is not None else set()
        for k in rk:
            if k in self.w_valu:
                q = self.w_valu[k]
                if k[0] in ('s', 'vcc'):
                    if cls in ('vmem', 'dma'):
                        req(q, 5)
                    elif cls == 'rdlane':
                        req(q, 4)
                    elif isvalu or ismfma:
                        req(q, 2)
                    else:
                        req(q, 1)
                else:
                    if ismfma or cls == 'perm':
                        req(q, 2)
                    elif cls == 'rdlane':
                        req(q, 1)
            if k in self.w_trans:
                req(self.w_trans[k], 1)
            if k in self.w_dot and not text.startswith('v_dot2c'):
                req(self.w_dot[k], 3)
            if k in self.w_mfma:
                q, ps, ds_, dn, dk = self.w_mfma[k]
                if ismfma and k in ck:
                    if isinstance(cread, R) and cread.k == dk and cread.i == ds_ and cread.n == dn and ps == passes:
                        pass
                    else:
                        req(q, ps + 2)
                else:
                    req(q, ps + 4)
            if k == ('m0', 0) and cls == 'dma':
                req(self.w_m0, 1)
        for k in wk:
            if k in self.w_mfma and not ismfma:
                q, ps = self.w_mfma[k][:2]
                req(q, ps + 4)
            if k in self.c_mfma and not ismfma:
                q, ps = self.c_mfma[k]
                req(q, ps - 1)
            if k in self.st_data:
                req(self.st_data[k], 2)
        if self.dry:
            self.pr.append((cls, need - p, text))
            return
        if need > p:
            self.nop(need - p)
        p = self.slot
        self.ninst += 1
        self.lines.append('    ' + text)
        self.slot += 1
        for k in wk:
            self.w_valu.pop(k, None)
            self.w_trans.pop(k, None)
            self.w_mfma.pop(k, None)
            self.w_dot.pop(k, None)
            if isvalu:
                self.w_valu[k] = p
                if text.startswith('v_dot'):
                    self.w_dot[k] = p
                if cls == 'trans':
                    self.w_trans[k] = p
            elif ismfma:
                d = w[0]
                self.w_mfma[k] = (p, passes, d.i, d.n, d.k)
            elif cls == 'salu' and k == ('m0', 0):
                self.w_m0 = p
        if ismfma:
            for k in ck:
                self.c_mfma[k] = (p, passes)
        if stdata is not None:
            for k in _keys([stdata]):
                self.st_data[k] = p

    def v(self, op, dst, *srcs, mods='', extra_w=(), extra_r=()):
        cls = 'valu'
        if op.split('_e')[0] in ('v_exp_f32', 'v_rcp_f32', 'v_rsq_f32', 'v_sqrt_f32', 'v_log_f32'):
            cls = 'trans'
        if op.startswith('v_permlane'):
            self.ins(f'{op} {dst}, {srcs[0]}', w=[dst, srcs[0]], r=[dst, srcs[0]], cls='perm')
            return
        if op.startswith('v_readfirstlane') or op.startswith('v_readlane'):
            cls = 'rdlane'
        rr = list(srcs) + list(extra_r)
        if op.startswith('v_fmac') or op.startswith('v_dot2c'):
            rr.append(dst)
        if op.startswith('v_cndmask') and len(srcs) == 2:
            rr.append('vcc')
            txt = f'{op} {dst}, {srcs[0]}, {srcs[1]}, vcc'
        else:
            txt = f'{op} {dst}, ' + ', '.join(str(s) for s in srcs)
        if mods:
            txt += ' ' + mods
        self.ins(txt, w=[dst] + list(extra_w), r=rr, cls=cls)

    def s(self, op, dst, *srcs):
        txt = f'{op} {dst}' + ''.join(f', {x}' for x in srcs)
        if op.startswith('s_cmp') or op.startswith('s_bitcmp'):
            self.ins(txt, w=['scc'], r=[dst] + list(srcs), cls='salu')
        else:
            self.ins(txt, w=[dst], r=list(srcs), cls='salu')

    def mfma(self, d, a, b, c):
        assert d.n == 16
        self.ins(f'v_mfma_f32_32x32x16_bf16 {d}, {a}, {b}, {c}', w=[d], r=[a, b, c], cls='mfma',
                 cread=c if isinstance(c, R) else None, passes=8)

    def mfma16(self, d, a, b, c):
        assert d.n == 4
        self.ins(f'v_mfma_f32_16x16x32_bf16 {d}, {a}, {b}, {c}', w=[d], r=[a, b, c], cls='mfma',
                 cread=c if isinstance(c, R) else None, passes=4)

    def ds(self, op, *ops, off=0, tag=None):
        assert 0 <= off < 65536, off
        o = f' offset:{off}' if off else ''
        if op.startswith('ds_read'):
            self.ins(f'{op} {ops[0]}, {ops[1]}{o}', w=[ops[0]], r=[ops[1]], cls='ds')
        else:
            self.ins(f'{op} {ops[0]}, {ops[1]}{o}', w=[], r=[ops[0], ops[1]], cls='ds')
        if not self.dry:
            self.lgq.append(tag)

    def bload(self, op, dst, voff, srd, soff, off=0, flags='', tag=None):
        assert 0 <= off < 4096
        o = f' offset:{off}' if off else ''
        f = ' ' + flags if flags else ''
        self.ins(f'{op} {dst}, {voff}, {srd}, {soff} offen{o}{f}', w=[dst], r=[voff, srd, soff], cls='vmem')
        if not self.dry:
            self.vmq.append(tag)

    def bstore(self, op, data, voff, srd, soff, off=0, flags='', tag=None):
        assert 0 <= off < 4096
        o = f' offset:{off}' if off else ''
        f = ' ' + flags if flags else ''
        self.ins(f'{op} {data}, {voff}, {srd}, {soff} offen{o}{f}', w=[], r=[data, voff, srd, soff], cls='vmem',
                 stdata=data if data.n >= 3 else None)
        if not self.dry:
            self.vmq.append(tag)

    def dma(self, voff, srd, soff, tag=None, op='buffer_load_dwordx4', off=0, flags=''):
        assert 0 <= off < 4096
        o = f' offset:{off}' if off else ''
        if flags:
            o += ' ' + flags
        self.ins(f'{op} {voff}, {srd}, {soff} offen{o} lds', w=[], r=[voff, srd, soff, 'm0'], cls='dma')
        if not self.dry:
            self.vmq.append(tag)

    def gload(self, op, dst, voff, sbase, flags='', tag=None):
        f = ' ' + flags if flags else ''
        self.ins(f'{op} {dst}, {voff}, {sbase}{f}', w=[dst], r=[voff, sbase], cls='vmem')
        if not self.dry:
            self.vmq.append(tag)

    def _cnt(self, q, tags):
        if not isinstance(tags, (list, tuple, set)):
            tags = [tags]
        tags = set(tags)
        for idx in range(len(q) - 1, -1, -1):
            if q[idx] in tags:
                return len(q) - 1 - idx
        return None

    def wait(self, vm=None, lg=None):
        parts = []
        if vm is not None:
            n = 0 if vm == 'all' else self._cnt(self.vmq, vm)
            if vm == 'all' and not self.vmq:
                n = None
            if n is not None:
                n = min(n, 63)
                parts.append(f'vmcnt({n})')
                if not self.dry:
                    self.vmq = self.vmq[len(self.vmq) - n:] if n else []
        if lg is not None:
            n = 0 if lg == 'all' else self._cnt(self.lgq, lg)
            if lg == 'all' and not self.lgq:
                n = None
            if n is not None:
                n = min(n, 15)
                parts.append(f'lgkmcnt({n})')
                if not self.dry:
                    self.lgq = self.lgq[len(self.lgq) - n:] if n else []
        if parts:
            self.ins('s_waitcnt ' + ' '.join(parts), cls='other')

    def barrier(self):
        self.ins('s_barrier', cls='other')

    def other(self, text, w=(), r=()):
        self.ins(text, w=w, r=r, cls='other')

    def text(self):
        return '\n'.join(self.lines) + '\n'


def kernel_file(kernels, header_comment=''):
    out = []
    if header_comment:
        out += ['; ' + l for l in header_comment.split('\n')]
    if len(kernels) == 1 and kernels[0]['name'] == NAME + '_kernel':
        k = kernels[0]
        out.append(f"; @launch grid=({k['grid'][0]},{k['grid'][1]},{k['grid'][2]}) block=({k['block'][0]},{k['block'][1]},{k['block'][2]}) lds={k['lds']}")
    else:
        for k in kernels:
            out.append(f"; @launch kernel={k['name']} grid=({k['grid'][0]},{k['grid'][1]},{k['grid'][2]}) block=({k['block'][0]},{k['block'][1]},{k['block'][2]}) lds={k['lds']}")
    out.append('.amdgcn_target "amdgcn-amd-amdhsa--gfx950"')
    out.append('.text')
    seen = set()
    for k in kernels:
        if k['name'] in seen:
            continue
        seen.add(k['name'])
        out += [f".globl {k['name']}", '.p2align 8', f".type {k['name']},@function", f"{k['name']}:"]
        out.append(k['body'])
    out.append('.section .rodata,"a"')
    seen = set()
    for k in kernels:
        if k['name'] in seen:
            continue
        seen.add(k['name'])
        out += ['.p2align 6', f".amdhsa_kernel {k['name']}",
                f"  .amdhsa_next_free_vgpr {k['vgpr']}",
                f"  .amdhsa_next_free_sgpr {k['sgpr']}",
                f"  .amdhsa_accum_offset {k['accum']}",
                "  .amdhsa_group_segment_fixed_size 0",
                "  .amdhsa_kernarg_size 80",
                "  .amdhsa_user_sgpr_count 2",
                "  .amdhsa_user_sgpr_kernarg_segment_ptr 1",
                "  .amdhsa_system_sgpr_workgroup_id_x 1",
                ".end_amdhsa_kernel"]
    return '\n'.join(out) + '\n'
```

```python
import sys, struct
from collections import deque
from emit import *


def fh(f):
    return '0x%08x' % struct.unpack('<I', struct.pack('<f', f))[0]


L_WP, L_KVS, L_ZERO = 0, 1600, 4800
RB = 6400
RING = 122880
REND = RB + RING
L_T = REND
LDS_BYTES = L_T + 30720 + 256
assert LDS_BYTES <= 163840
HIW = 65536 - 1024

WS_FL = 0
WS_KVP = 1 << 20
WS_KVF = 3 << 20
WS_HX = 4 << 20
HXW = 21504
WS_PART = 32 << 20
OWN = 73728
WS_DUMP = 64 << 20
LOG2E = 1.4426950408889634

sX, sWQ, sW1, sW2, sWO, sOUT, sWS, sDBG, sWP = (S(24 + 4 * n, 4) for n in range(9))
sI, sJ, sW, sWg = S(60), S(61), S(62), S(63)
sQb = [S(64 + n) for n in range(9)]
sPb = sQb[0:5]
sU = sQb[5:9] + [S(99)]
s1b = [S(73 + n) for n in range(9)]
sM1, sM2, sM4 = S(82), S(83), S(84)
sMask, sLog, sRg, sR2, sC = S(85), S(86), S(87), S(88), S(89)
sPo = [S(90 + n) for n in range(3)]
sHo, sHi = S(93), S(94)
sFo = S(95)
sT0, sT1, sT2, sT3 = S(96), S(97), S(98), S(99)
sD = sT0
sOne = S(100)
sA0, sA1 = S(4), S(5)
sApair = S(6, 2)
sR0 = S(8)
sHs = [S(9), S(19), S(3), S(9)]
sHp = [S(10, 2), S(16, 2), S(22, 2), S(10, 2)]
sO0, sZ0 = S(12), S(13)
sYpair = S(14, 2)
sCnt = S(18)
sPf = S(17)
sStamp = S(20, 2)
sFp = S(101)
sZp = [S(74, 2), S(76, 2), S(78, 2)]
sZa = [S(73), S(80), S(81)]
sZb = [S(12), S(13), S(8)]

vTid, vLane = V(0), V(1)
vP1 = [V(2, 2), V(4, 2)]
vAQ = [V(6 + 2 * n, 2) for n in range(4)]
vDQ = [V(14 + n) for n in range(4)]
vP2 = [V(6, 2), V(8, 2)]
vD2 = [V(10 + n) for n in range(4)]
vDO = [V(14), V(15)]
vRi, vRo = V(16), V(17)
vD1 = [V(18 + n) for n in range(4)]
vWm, vWe, vKm, vKe, vTw, vTa, vTb, vPst, vL16, vRinv = (V(22 + n) for n in range(10))
vStm = V(0)
PL, PH = V(32, 4), V(36, 4)
Y = V(40, 144)
YB = [Y[16 * n:16 * n + 16] for n in range(9)]
W = V(184, 72)
vOne, vW4 = W[70], W[71]
PKV = [W[52 + n] for n in range(14)]
PKS = [S(0), S(1), S(3), S(9), S(19), S(10), S(11), S(16)]
X = A(0, 144)
AF = A(144, 32)
AS = A(176, 32)
HPa = A(208, 48)
HPS = [HPa[8 * n:8 * n + 8] for n in range(6)] + [AS[8 * n:8 * n + 8] for n in range(3)]
FACC = [[YB[4], YB[5]], [YB[6], YB[7], YB[8]], [YB[5], YB[0]], [YB[1], YB[2]]]
HS = [YB[4][0:8], YB[4][8:16], YB[6][0:8], YB[6][8:16], YB[7][0:8], YB[5][0:8], YB[5][8:16], YB[1][0:8], YB[1][8:16]]
HG = [(0, 2), (2, 5), (5, 7), (7, 9)]
QA = [YB[0], YB[1], YB[2], YB[3]]
GB = [YB[3][4 * n:4 * n + 4] for n in range(4)] + [YB[8][4 * n:4 * n + 4] for n in range(4)] + [YB[7][8:12], YB[7][12:16]]

B8 = ('v_add_f32_dpp', 'ds_', 'buffer_', 'global_', 'v_mfma', 'v_accvgpr', 'v_pk_', 'v_cvt_pk', 'v_fma_', 'v_max3', 'v_min3', 'v_lshl_add', 'v_add_lshl', 'v_mad', 'v_add3', 'v_bfe', 'v_mul_lo', 'v_writelane', 'v_readlane', 's_mem', 's_load')
VALU = ('valu', 'trans', 'perm', 'rdlane')
VOP3 = ('v_cvt_pk', 'v_fma_', 'v_max3', 'v_min3', 'v_accvgpr', 'v_pk_', 'v_lshl_add', 'v_add3', 'v_bfe', 'v_mul_lo', 'v_writelane')


class Th:
    def __init__(self, name, gen, prio):
        self.name, self.g, self.prio = name, gen, prio
        self.head, self.wake, self.done = None, 0, False

    def peek(self, sc, force=False):
        while True:
            if self.done:
                return None
            if sc.stepno < self.wake and not force:
                return None
            if self.head is None:
                try:
                    self.head = next(self.g)
                except StopIteration:
                    self.done = True
                    return None
            h = self.head
            if isinstance(h, tuple):
                if h[0] == 'delay':
                    self.wake = sc.stepno + h[1]
                    self.head = None
                    if force:
                        return None
                elif h[0] == 'until':
                    if h[1] not in sc.ev:
                        return None
                    self.head = None
                elif h[0] == 'set':
                    sc.ev.add(h[1])
                    sc.evstep[h[1]] = sc.stepno
                    if h[1] in sc.o['sev']:
                        sc.stamp(f'{h[1]}@{sc.stepno}')
                    self.head = None
                elif h[0] == 'spawn':
                    sc.spawn(*h[1:])
                    self.head = None
                else:
                    raise ValueError(h)
                continue
            return h


class Rec:
    def __init__(self, e):
        self.__dict__.update(e=e, q=[], glue=False, dry=False)

    def mark(self, name):
        self.q.append(name)

    def __getattr__(self, name):
        fn = getattr(self.e, name)

        def rec(*a, **k):
            f = lambda: fn(*a, **k)
            if self.glue or (name == 's' and a[0].startswith('s_cselect')):
                prev = self.q.pop()
                self.q.append(lambda: (prev(), f()))
            else:
                self.q.append(f)
        return rec


class Gen:
    def __init__(self, dbg=None, opts=None):
        self.e = Emitter()
        self.dbg = dbg
        self.o = dict(LA=7, bytes=52, rot=True, touch=1, stamps=False, map='a', nD=3, bq=7, bf=7, bg=7,
                      ilv=True, g1=(0, 1, 2), st_c=8, d_clr=12, clr0='norm6', pf=3, pf1=('norm4', 14, range(8)), pf2=('normdone', 12, range(8)), pst=False, tlb=2, pro_0=12, pro_t=200, pfo=False, wfl='', xfl='', pfl='', pro_k=3, pro_tk=3, pro_mk=4, pro_x=2, pro_i=4, pro_j=3, pro_lag=4, pro_w=8, pro_wn=6, pro_v=2, rgm=0, pro_n='norm1', g2='00 01 02 03 10 11 12 13 20 21 22 23 L0 L1 L2 L3 U4', rs1=True, d_r1=40, rdy0='norm12', d_kvr=50, d_gl=40, d_kv2=50, d_hl=60, d_rl=40, d_kv=50, d_o=50, d_r2=50, sfl='sc1', prio=(0.2, (0.15, 0.15, 0.15, 0.15), 0.1, 3, 0.12), urg=1, lfl='', ta_q=3.2, ta_d=2.1, ta_s=0.5, ta_slack=1.0, d_ack=30, d_poll=28, d_load=32, d_vis=45, ofl='', verbose=False,
                      sev=('qkv', 'acc3', 'tile0', 'tile8', 'pflag2', 'polled2'))
        if opts:
            self.o.update(opts)
        self.ev, self.evstep = set(), {}
        self.threads = []
        self.stepno = 0
        self.dma_q = deque()
        self.slow = []
        self.nstamp = 0
        self.nslow = 0
        self.slow_names = []
        self.stamp_names = []
        self.stop = False
        self.build_stream()

    def build_stream(self):
        G, ST, IT = [], [], []
        nD = self.o['nD']

        def grp(size, mreg, dmas):
            G.append(dict(size=size, mreg=mreg, dmas=dmas, addr=None))
            return len(G) - 1

        pend = []
        for g3 in range(4):
            accs = FACC[g3]
            for kp in range(9):
                if g3 == 0:
                    gq = grp(16384, sM4, [(vDQ[kk], sWQ, sQb[kp], 1024 * kk) for kk in range(4)])
                    G[gq]['ta'] = self.o['ta_q']
                if g3 == 1:
                    g = grp(16384, sM4, [(vD1[c], sW1, s1b[kp], 1024 * c) for c in range(4)])
                    ST.append([g])
                else:
                    g = grp(8192, sM2, [(vD1[c], sW1, s1b[kp], 1024 * c) for c in range(2)])
                    if g3 == 0:
                        ST.append([gq, g])
                    else:
                        pend.append(g)
                        if len(pend) == 2:
                            ST.append(pend)
                            pend = []
                if kp == 0 and g3 > 0:
                    G[g]['pre'] = f'd1_{g3}'
                for kk in range(4):
                    ks = 4 * kp + kk
                    if g3 == 0:
                        for tl in (1, 3, 2, 0):
                            IT.append(dict(g=gq, off=1024 * kk, pat=vAQ[tl], us=256, b=X[4 * ks:4 * ks + 4], acc=QA[tl],
                                           first=ks == 0, need=[f'norm{ks}'] if tl == 1 else [], ph='q'))
                        if ks == 35:
                            IT[-1]['done'] = ['qkv']
                    for t in range(len(accs)):
                        off = ((t >> 1) * 2 + (kk >> 1)) * 4096 + (kk & 1) * 2048 if g3 == 1 else kk * 2048
                        it = dict(g=g, off=off, pat=vP1[t & 1], us=512, b=X[4 * ks:4 * ks + 4],
                                  acc=accs[t], first=ks == 0, need=[], ph='q' if g3 == 0 else 'f')
                        if ks == 0 and t == 0:
                            it['need'] = {0: [], 1: ['clr', 'clr2', 'pf1', 'pfa'],
                                          2: ['hf0', 'qaread'], 3: ['qaread']}[g3]
                        IT.append(it)
            IT[-1].setdefault('done', []).append(f'acc{g3}')
        assert not pend
        self.gacc = [X[16 * n:16 * n + 16] for n in range(8)] + [YB[8]]
        self.OF, self.OP = YB[0][0:12], YB[7][8:16]
        started = set()

        def tiles(U):
            return [2 * U, 2 * U + 1] if U < 4 else [8]

        def kitems(g, U, blocks, needs):
            for (off, b, pats, us, nd) in blocks:
                for t, n in enumerate(tiles(U)):
                    it = dict(g=g, off=off, pat=pats[t], us=us, b=b, acc=self.gacc[n], first=n not in started,
                              need=list(nd) if t == 0 else [], ph='g')
                    if it['first']:
                        started.add(n)
                        if n == 8:
                            it['need'].append('xlow')
                    IT.append(it)

        hgrp = {0: 0, 1: 1, 4: 1, 2: 2, 3: 3}
        hslot = {0: 0, 1: 2, 4: 4, 2: 5, 3: 7}

        def w2grp(U, gi):
            nt = 2 if gi < 4 else 1
            g = grp(8192 * nt, sM4 if nt == 2 else sM2, [(vD2[c], sW2, sD, 1024 * (c & 1)) for c in range(2 * nt)])
            G[g]['m0b'] = 2
            G[g]['sadd'] = (sPb[U], sU[gi])
            bl = []
            for w in range(4):
                for t in range(nt):
                    own = gi < 2 or (gi == 4 and w < 2)
                    hu = 4 if gi == 4 else 2 * (gi & 1) + (w >> 1)
                    sl = hslot[hu] + (t if (own or gi == 4) else t ^ 1)
                    src = HS[sl] if own else HPS[sl]
                    o = 4 * (w & 1)
                    nd = [('hf' if own else 'hp') + str(hgrp[hu])] if (w & 1) == 0 and t == 0 else []
                    bl.append((w * 2048 * nt + t * 2048, src[o:o + 4], vP2, 1024, nd))
            kitems(g, U, bl, None)
            return g

        def wogrp(U):
            g = grp(8192, sM2, [(vDO[c], sWO, sPb[U], 1024 * c) for c in range(2)])
            bl = []
            for w in range(4):
                src = self.OF if w < 2 else self.OP
                bl.append((w * 2048, src[4 * (w & 1):4 * (w & 1) + 4], vP1, 512, ['of'] if w == 0 else ['op'] if w == 2 else []))
            kitems(g, U, bl, None)
            for n in tiles(U):
                IT.append(dict(g=None, wox=n, b=self.OF[8:12], acc=self.gacc[n], first=False, need=['wox'], ph='g', done=[f'tile{n}']))
            return g

        for tok in self.o['g2'].split():
            U = int(tok[1])
            if tok[0] in 'EU':
                for gi in (0, 2, 1):
                    ST.append([w2grp(U, gi)])
            if tok[0] in 'LU':
                ST.append([w2grp(U, 3)])
                ST.append([w2grp(U, 4), wogrp(U)])
            if tok[0] in '0123':
                ST.append([w2grp(U, int(tok[0]))])
            if tok[0] == 'W':
                ST.append([w2grp(U, 4), wogrp(U)])
        self.G, self.ST, self.IT = G, ST, IT
        for s, gs in enumerate(ST):
            for g in gs:
                G[g]['stage'] = s
        self.synced = -1
        self.next_stage = 0
        self.rhead = RB
        self.live = deque()
        self.rlimit = RB + 65536
        self.stage_gate = {}
        first_g2 = next(s for s, gs in enumerate(ST) if G[gs[0]]['dmas'][0][1] is sW2)
        self.stage_gate[first_g2] = 'tab2'

    def try_alloc_stage(self):
        s = self.next_stage
        if s >= len(self.ST):
            return False
        if s in self.stage_gate and self.stage_gate[s] not in self.ev:
            return False
        head = self.rhead
        ranges = []
        for g in self.ST[s]:
            sz = self.G[g]['size']
            st = head if head + sz <= self.rlimit else RB
            for (_, a, b) in list(self.live) + ranges:
                if st < b and a < st + sz:
                    return False
            ranges.append((s, st, st + sz))
            head = st + sz
        for g, r in zip(self.ST[s], ranges):
            self.G[g]['addr'] = r[1]
            self.live.append(r)
            self.queue_group(g)
        self.rhead = head
        self.next_stage += 1
        return True

    def queue_group(self, g):
        e = self.e
        gr = self.G[g]
        if gr.get('pre'):
            self.dma_q.extend(self.d1_update(int(gr['pre'][-1])))
        self.dma_q.append(lambda: e.s('s_add_u32', 'm0', gr['mreg'], gr['addr']))
        if gr.get('sadd'):
            self.dma_q.append(lambda: e.s('s_add_u32', sD, *gr['sadd']))
        for n_, (voff, srd, soff, imm) in enumerate(gr['dmas']):
            if n_ and n_ == gr.get('m0b'):
                self.dma_q.append(lambda: e.s('s_add_u32', 'm0', gr['mreg'], gr['addr'] + 2048))
            f = lambda voff=voff, srd=srd, soff=soff, imm=imm: e.dma(voff, srd, soff, tag=('st', gr['stage']), off=imm, flags=self.o['wfl'])
            f.ta = gr.get('ta', self.o['ta_d'])
            f.stage = gr['stage']
            self.dma_q.append(f)

    def d1_update(self, g3):
        e = self.e
        n = 4 if g3 == 1 else 2
        pre = []
        if g3 == 3:
            def d3():
                e.s('s_cmp_eq_u32', sRg, 1)
                e.s('s_cselect_b32', sT1, -3, 1)
                e.s('s_lshl_b32', sT1, sT1, 7)
            pre = [d3]
        return pre + [lambda c=c: e.v('v_add_u32', vD1[c], sT2 if g3 == 2 else sT1, vD1[c]) for c in range(n)]

    def fill(self):
        while self.try_alloc_stage():
            pass

    def flush_dma(self):
        while self.dma_q:
            self.dma_q.popleft()()

    def sync(self, s):
        e = self.e
        assert s == self.synced + 1
        if self.next_stage <= s:
            g = self.stage_gate.get(self.next_stage)
            if g:
                self.drain_until(g)
            self.fill()
        assert self.next_stage > s, ('stage not allocated', s)
        if not any(t == ('st', s) for t in e.vmq) or self.dma_q:
            need = sum(len(self.G[g]['dmas']) for g in self.ST[s])
            while self.dma_q and self.issued.get(s, 0) < need:
                self.pop_dma()
        e.wait(vm=[('st', s)])
        e.barrier()
        self.synced = s
        self.ev.add(f'sync{s}')
        while self.live and self.live[0][0] <= s - 2:
            self.live.popleft()
        self.fill()

    issued = None

    def pop_dma(self):
        e = self.e
        n0 = len(e.vmq)
        f = self.dma_q.popleft()
        f()
        if len(e.vmq) > n0:
            s = e.vmq[-1][1]
            self.issued[s] = self.issued.get(s, 0) + 1
            self.ta_use(getattr(f, 'ta', self.o['ta_d']) * (len(e.vmq) - n0))

    ta = 0.0
    st = 0.0

    def ta_use(self, c):
        self.ta = max(self.ta, self.stepno) + c

    def ta_ok(self):
        return self.ta <= self.stepno + self.o['ta_slack']

    def ta_cost(self, pr):
        c = 0
        for cls, st, txt in pr:
            if cls in ('vmem', 'dma'):
                c += self.o['ta_d'] if 'x4' in txt else self.o['ta_d'] / 2 if 'x2' in txt else self.o['ta_s']
        return c

    def spawn(self, name, gen, prio):
        self.threads.append(Th(name, gen, prio))
        self.threads.sort(key=lambda t: t.prio)

    @staticmethod
    def size(txt):
        op = txt.split()[0]
        if op.startswith(B8) or '_e64' in op:
            return 8
        for a in txt.replace(',', ' ').split()[1:]:
            if a.startswith('0x') or (a.lstrip('-').isdigit() and not -16 <= int(a) <= 64):
                return 8 if not op.startswith(('s_waitcnt', 's_nop', 's_sleep')) else 4
        return 4

    @staticmethod
    def cost(pr):
        return sum(2 if cls in ('trans', 'perm') else 1 for cls, st, txt in pr)

    def nbytes(self, pr):
        return sum(self.size(txt) for cls, st, txt in pr)

    def pick(self, kinds, allow_stall=False, force=False, fit=None):
        ths = list(self.threads)
        if kinds == ('vm',):
            ths.sort(key=lambda t: 0 if t.name == 'attn' else 1)
        for th in ths:
            while True:
                h = th.peek(self, force)
                if h is None:
                    break
                pr = self.e.probe(h)
                if not pr:
                    h()
                    th.head = None
                    continue
                cls = pr[0][0]
                k = 'mfma' if cls == 'mfma' else 'vm' if any(p[0] in ('vmem', 'dma') and 'dwordx' in p[2] for p in pr) else 'mem' if any(p[0] in ('ds', 'vmem') for p in pr) else \
                    'valu' if cls in VALU else 'sal'
                if getattr(h, 'paced', False) and self.st > self.stepno:
                    break
                if k in kinds and (allow_stall or pr[0][1] <= 0) and (fit is None or fit(pr)):
                    return th, h, pr
                break
        return None

    def run(self, sel):
        th, h, pr = sel
        if getattr(h, 'data', False) and self.o.get('skip'):
            th.head = None
            return self.cost(pr)
        h()
        th.head = None
        c = self.ta_cost(pr)
        if c:
            self.ta_use(c)
        ns = sum(1 for p in pr if p[2].startswith('buffer_store_dwordx4'))
        if ns:
            self.st = max(self.st, self.stepno) + ns * self.o['st_c']
        return self.cost(pr)

    def dma_head(self):
        for n, f in enumerate(self.dma_q):
            if hasattr(f, 'stage'):
                return f.stage <= self.synced + self.o.get('urg', 2), n
        return False, len(self.dma_q)

    def windows(self, n0, budget):
        e = self.e
        bmax = self.o['bytes'] + 8 * (budget - 7)

        def state():
            ls = [l.strip() for l in e.lines[n0:] if not l.endswith(':') and not l.strip().startswith(';')]
            return (sum(2 if l.startswith(('v_exp', 'v_rcp', 'v_rsq', 'v_sqrt', 'v_permlane')) else 1 for l in ls),
                    sum(self.size(l) for l in ls))

        def fit(pr):
            u, b = state()
            c = self.cost(pr)
            return (u + c <= (budget if pr[-1][0] in VALU else budget - 1) and b + self.nbytes(pr) <= bmax) or (u <= 3 and c > 2)

        k = 0
        while k < 2:
            if self.dma_q and not hasattr(self.dma_q[0], 'stage') and not hasattr(self.dma_q[0], 'heavy'):
                self.pop_dma()
                k += 1
                continue
            if not self.ta_ok():
                break
            urgent = self.dma_q and self.dma_head()[0]
            sel = None if urgent else self.pick(('vm',), fit=fit)
            if sel:
                self.run(sel)
            elif self.dma_q:
                if e.probe(self.dma_q[0])[0][1] > 0:
                    sel = self.pick(('sal', 'mem'), fit=fit)
                    if sel:
                        self.run(sel)
                    else:
                        break
                self.pop_dma()
            else:
                break
            k += 1
        k = 0
        while k < 2:
            sel = self.pick(('mem',), fit=fit)
            if not sel:
                break
            self.run(sel)
            k += 1
        while True:
            sel = self.pick(('valu', 'sal'), fit=fit)
            if not sel:
                break
            self.run(sel)

    def drain_until(self, key):
        start = self.e.ninst
        acc = 0.0
        while (key not in self.ev) if key else any(not t.done for t in self.threads):
            if self.stop:
                return
            while acc >= 8:
                acc -= 8
                self.stepno += 1
            if self.dma_q and (self.ta_ok() or not hasattr(self.dma_q[0], 'stage')):
                self.pop_dma()
                acc += 1
                continue
            kinds = ('mfma', 'vm', 'mem', 'valu', 'sal') if self.ta_ok() else ('mfma', 'mem', 'valu', 'sal')
            sel = self.pick(kinds) or self.pick(kinds, allow_stall=True)
            if sel:
                acc += max(sel[2][0][1], 0)
                acc += self.run(sel)
                continue
            if not self.ta_ok() and (self.dma_q or self.pick(('vm',), allow_stall=True)):
                self.stepno += 1
                continue
            if key and key in self.ev:
                break
            if self.st > self.stepno and any(getattr(t.head, 'paced', False) for t in self.threads if not t.done):
                self.stepno += 1
                continue
            sleepers = [t for t in self.threads if not t.done and t.wake > self.stepno]
            if sleepers:
                self.stepno = min(t.wake for t in sleepers)
                continue
            if all(t.done for t in self.threads) and not key:
                break
            raise RuntimeError(f'deadlock waiting for {key}: ' + str([(t.name, t.head) for t in self.threads if not t.done]))
        if self.o['verbose'] and self.e.ninst - start > 8:
            print(f'drain for {key} at step {self.stepno}: {self.e.ninst - start} instrs', file=sys.stderr)

    def reads(self, idx):
        e = self.e
        it = self.IT[idx]
        fr = AF[4 * (idx % 8):4 * (idx % 8) + 4]
        if it['g'] is None:
            if 'wox' not in self.ev:
                self.drain_until('wox')
            e.ds('ds_read_b64_tr_b16', fr[0:2], self.vWX, off=64 * it['wox'], tag=('fr', idx))
            return 1
        gr = self.G[it['g']]
        if gr['stage'] > self.synced:
            self.sync(gr['stage'])
        a = gr['addr'] + it['off']
        pat = it['pat'][0]
        if a + it['us'] > 65535:
            pat, a = it['pat'][1], a - HIW
        e.ds('ds_read_b64_tr_b16', fr[0:2], pat, off=a, tag=('fr', idx))
        e.ds('ds_read_b64_tr_b16', fr[2:4], pat, off=a + it['us'], tag=('fr', idx))
        return 2

    def stream(self):
        e = self.e
        LA = self.o['LA']
        IT = self.IT
        n = len(IT)
        for idx in range(LA):
            self.reads(idx)
        m = 0
        while m < n and not self.stop:
            it = IT[m]
            ev_ = self.o.get('every')
            if ev_ and ev_[0] <= self.stepno < ev_[1] and self.stepno >= self.next_ev:
                self.stamp(str(self.stepno))
                self.next_ev = self.stepno + ev_[2]
            budget = self.o[{'q': 'bq', 'f': 'bf', 'g': 'bg'}[it['ph']]]
            sel = self.pick(('mfma',))
            if sel:
                self.run(sel)
                self.windows(len(e.lines) - 1, budget)
                self.stepno += 1
                continue
            for k in it['need']:
                if k not in self.ev:
                    self.drain_until(k)
            if self.stop:
                break
            e.wait(lg=[('fr', m)])
            fr = AF[4 * (m % 8):4 * (m % 8) + 4]
            e.mfma(it['acc'], fr, it['b'], 0 if it['first'] else it['acc'])
            n0 = len(e.lines) - 1
            for k in it.get('done', ()):
                self.ev.add(k)
                self.evstep[k] = self.stepno
                if k in self.o['sev']:
                    self.stamp(f'{k}@{self.stepno}')
            if m + LA < n:
                self.reads(m + LA)
            if m % 2 == 1:
                e.wait(lg=[('fr', m + 1), ('fr', m + 2)])
            self.windows(n0, budget)
            self.stepno += 1
            m += 1
        self.drain_until(None)

    def dump(self, regs):
        e = self.e
        e.wait(vm='all', lg='all')
        e.fence_all()
        t0, t1 = V(0), V(1)
        e.v('v_lshlrev_b32', t0, 2, vTid)
        e.s('s_mul_i32', sT0, sWg, len(regs) * 1024)
        e.s('s_add_u32', sT0, sT0, WS_DUMP)
        for r in regs:
            if r.k == 'a':
                e.v('v_accvgpr_read_b32', t1, r)
                r = t1
            e.bstore('buffer_store_dword', r, t0, sWS, sT0)
            e.s('s_add_u32', sT0, sT0, 1024)
        e.wait(vm='all')
        e.other('s_endpgm')
        self.stop = True

    def stamp(self, name, real=False):
        if not self.o['stamps'] or self.e.dry or self.nstamp >= 47 and not real:
            return
        e = self.e
        if real or self.e.ninst - self.last_stamp < 24:
            e.wait(lg='all')
            e.other('s_waitcnt lgkmcnt(0)')
        self.last_stamp = self.e.ninst
        vStm = self.vs
        if self.nstamp > 1:
            e.ins(f'v_writelane_b32 {vStm}, {sStamp[0]}, {self.nstamp - 1}', w=[vStm], r=[vStm])
        e.other(f's_memtime {sStamp}', w=[sStamp])
        if real:
            e.other('s_waitcnt lgkmcnt(0)')
            e.ins(f'v_writelane_b32 {vStm}, {sStamp[0]}, {self.nstamp}', w=[vStm], r=[vStm])
            e.other(f's_memrealtime {sStamp}', w=[sStamp])
            e.other('s_waitcnt lgkmcnt(0)')
            e.ins(f'v_writelane_b32 {vStm}, {sStamp[0]}, 61', w=[vStm], r=[vStm])
        self.stamp_names.append(name)
        self.nstamp += 1

    last_stamp = -100
    vs = YB[5][0]
    next_ev = 0

    def stamp_out(self):
        if not self.o['stamps']:
            return
        e = self.e
        e.v('v_lshlrev_b32', W[0], 2, vLane)
        e.s('s_lshl_b32', sT0, S(2), 2)
        e.s('s_add_u32', sT0, sT0, sW)
        e.s('s_lshl_b32', sT0, sT0, 8)
        e.s('s_add_u32', sT0, sT0, WS_DUMP)
        e.bstore('buffer_store_dword', vStm, W[0], sWS, sT0)

    def srd(self, d, ptr, nbytes):
        e = self.e
        e.s('s_mov_b32', d[0], ptr[0])
        e.s('s_and_b32', d[1], ptr[1], '0xffff')
        e.s('s_mov_b32', d[2], nbytes)
        e.s('s_mov_b32', d[3], '0x20000')

    def mod(self, r, m, subs):
        e = self.e
        for sub in subs:
            e.s('s_cmp_ge_u32', r, sub)
            e.s('s_cselect_b32', sT3, sub, 0)
            e.s('s_sub_u32', r, r, sT3)

    def inc9(self, r, m=9):
        e = self.e
        e.s('s_add_u32', r, r, 1)
        e.s('s_cmp_eq_u32', r, m)
        e.s('s_cselect_b32', r, 0, r)

    def prologue(self):
        e = self.e
        o = self.o
        t = [W[n] for n in range(72)]
        junk = t[67]
        e.s('s_cmp_ge_u32', S(2), 256)
        e.other('s_cbranch_scc1 L_end')
        e.other('s_load_dwordx16 s[4:19], s[0:1], 0')
        e.other('s_load_dwordx4 s[20:23], s[0:1], 64')
        if o['stamps']:
            e.other(f's_memtime {S(64, 2)}', w=[S(64, 2)])
            e.other(f's_memrealtime {S(66, 2)}', w=[S(66, 2)])
            self.stamp_names.append('start')
            self.nstamp = 1
        if o['touch']:
            pc = S(96, 2)
            e.other(f's_getpc_b64 {pc}', w=[pc])
            e.label('L_pc')
            if o['touch'] == 2:
                e.v('v_lshlrev_b32', t[0], 7, vTid)
                for rnd in range(2):
                    e.ins(f'v_min_u32 {t[1]}, L_end-L_pc, {t[0]}', w=[t[1]], r=[t[0]])
                    e.gload('global_load_dword', junk, t[1], pc, tag='pf')
                    if rnd == 0:
                        e.v('v_add_u32', t[0], 32768, t[0])
            else:
                e.s('s_bfe_u32', sT2, S(2), '0x30003')
                e.v('v_lshrrev_b32', t[0], 2, vTid)
                e.v('v_lshl_add_u32', t[0], sT2, 6, t[0])
                e.v('v_lshlrev_b32', t[0], 7, t[0])
                e.ins(f'v_min_u32 {t[1]}, L_end-L_pc, {t[0]}', w=[t[1]], r=[t[0]])
                e.gload('global_load_dword', junk, t[1], pc, tag='pf')
        e.v('v_and_b32', vLane, 63, vTid)
        e.v('v_lshrrev_b32', t[0], 6, vTid)
        e.v('v_readfirstlane_b32', sW, t[0])
        lni = {'a': 3, 'b': 2, 'c': 1}[o['map']]
        xcd, slot = sRg, sR2
        e.s('s_and_b32', xcd, S(2), 7)
        e.s('s_lshr_b32', slot, S(2), 3)
        e.s('s_and_b32', sT0, xcd, (16 >> lni) - 1)
        e.s('s_lshl_b32', sT0, sT0, lni)
        e.s('s_and_b32', sT1, slot, (1 << lni) - 1)
        e.s('s_add_u32', sI, sT0, sT1)
        e.s('s_lshr_b32', sT0, xcd, 4 - lni)
        e.s('s_lshl_b32', sT0, sT0, 5 - lni)
        e.s('s_lshr_b32', sT2, slot, lni)
        e.s('s_add_u32', sJ, sT0, sT2)
        e.s('s_lshl_b32', sT1, sT1, 3 - lni)
        if lni != 3:
            e.s('s_lshr_b32', sT0, sI, lni)
            e.s('s_add_u32', sT1, sT1, sT0)
        else:
            e.s('s_lshl_b32', sT2, sT2, 1)
        rho, ph = sLog, sC
        e.s('s_add_u32', rho, sT1, sT2)
        e.s('s_mov_b32', ph, sT1)
        self.mod(rho, 9, (18, 9, 9) if lni != 3 else (9,))
        if lni != 3:
            self.mod(ph, 9, (9,))
        if not o['rot']:
            e.s('s_mov_b32', rho, 0)
            e.s('s_mov_b32', ph, 0)
        vDX = [t[40 + n] for n in range(4)]
        r8, p8 = t[5], t[6]
        e.v('v_lshrrev_b32', r8, 3, vLane)
        e.v('v_and_b32', p8, 7, vLane)
        e.v('v_xor_b32', t[7], p8, r8)
        e.v('v_mul_u32_u24', vDX[0], 1152, r8)
        e.v('v_lshl_add_u32', vDX[0], t[7], 4, vDX[0])
        for c in range(1, 4):
            e.v('v_add_u32', vDX[c], c * (8 * 1152 - 1024), vDX[0])
        xcur, xbeg, xend, xs2 = sHo, sHi, sPo[0], sPo[1]
        e.s('s_lshl_b32', xbeg, sI, 2)
        e.s('s_add_u32', xbeg, xbeg, sW)
        e.s('s_mul_i32', xbeg, xbeg, 32 * 1152)
        e.s('s_add_u32', xend, xbeg, 1152)
        e.s('s_lshl_b32', xcur, rho, 7)
        e.s('s_add_u32', xcur, xcur, xbeg)
        e.s('s_lshl_b32', sM4, sW, 12)
        e.s('s_mul_i32', xs2, sW, 20480)

        T = Rec(e)
        self.e = T
        self.tables(t, r8, p8, rho, ph, xs2)
        self.e = e
        fq = T.q

        def fill(n=1 << 30, upto=None):
            while fq and n > 0:
                f = fq[0]
                if isinstance(f, str):
                    if f == 'xend' and not xdone[0]:
                        return
                    fq.pop(0)
                    if f == upto:
                        return
                    continue
                fq.pop(0)()
                n -= 1

        def need(mark):
            if mark in fq:
                fill(upto=mark)
        xdone = [False]
        fill(o['pro_0'], upto='k')
        e.other('s_waitcnt lgkmcnt(0)')
        self.srd(sX, S(4, 2), 2359296)
        xr, xr2 = [t[44 + n] for n in range(4)], [t[48 + n] for n in range(4)]
        G, SM, A16 = YB[6], YB[7][0:4], YB[7][4:8]
        mq = deque()

        def consume(kp):
            need('xr')
            e.wait(vm=[('x', kp)])
            if o['pst'] and kp in (0, 2, 4, 6, 8):
                self.stamp(f'x{kp}')
            for kk in range(4):
                ks = 4 * kp + kk
                e.ds('ds_read_b128', X[4 * ks:4 * ks + 4], (xr if kp < 4 else xr2)[kk], off=kp * 16384 if kp < 4 else (kp - 4) * 4096, tag=('xr', ks))

                def mm(ks=ks):
                    e.wait(lg=[('xr', ks)])
                    e.mfma(G, X[4 * ks:4 * ks + 4], X[4 * ks:4 * ks + 4], G if ks else 0)
                    fill(o['pro_i'])
                    e.mfma16(SM, A16, X[4 * ks:4 * ks + 4], SM if ks else 0)
                    fill(o['pro_i'] // 2)
                mq.append(mm)

        def wdma(n, keep=0):
            for _ in range(n):
                n0 = len(e.vmq)
                while self.dma_q and len(e.vmq) == n0:
                    if e.probe(self.dma_q[0])[0][1] > 0:
                        fill(1)
                    self.pop_dma()
                if len(mq) > keep:
                    mq.popleft()()

        def bar1(ncons):
            need('w')
            e.wait(lg=[('xr', 4 * min(ncons, 4) - 1)])
            e.barrier()
            self.rlimit = RB + 16384 * min(ncons, 4)
            self.fill()

        self.issued = {}
        lag = o['pro_lag']
        for kp in range(9):
            if kp == o['pro_k']:
                need('mem')
                fill(o['pro_t'])
                need('xr')
                if o['pst']:
                    self.stamp('tabs')
            if kp >= lag:
                consume(kp - lag)
            if kp < 4:
                e.s('s_add_u32', 'm0', sM4, RB + kp * 16384)
            else:
                e.s('s_add_u32', 'm0', xs2, RB + 65536 + (kp - 4) * 4096)
            if kp:
                e.s('s_add_u32', xcur, xcur, 128)
                e.s('s_cmp_eq_u32', xcur, xend)
                e.s('s_cselect_b32', xcur, xbeg, xcur)
            else:
                fill(1)
            for c in range(4):
                e.dma(vDX[c], sX, xcur, tag=('x', kp), off=1024 * c, flags=o['xfl'])
                if kp < lag:
                    fill(o['pro_j'])
                if len(mq) > (4 if c == 0 else 0):
                    mq.popleft()()
            for f in self.xtra.get(kp, ()):
                need('mem')
                f()
            if kp == o['pro_w'] and kp < 8:
                bar1(kp - lag + 1)
                wdma(o['pro_wn'])
        xdone[0] = True
        if o['pst']:
            self.stamp('xiss')
        for kp in range(9 - lag, 9):
            consume(kp)
            if mq and len(mq) > 4:
                mq.popleft()()
            if kp == 9 - lag and o['pro_w'] >= 8:
                bar1(kp)
            if kp == 8:
                need('wpd')
                e.wait(vm='wp')
                e.ds('ds_write_b32', t[31], t[10], off=L_WP, tag='wpw')
                e.ds('ds_write_b32', t[32], t[11], off=L_WP, tag='wpw')
            wdma(o['pro_v'], 1)
            while len(mq) > 1:
                mq.popleft()()
        while mq:
            mq.popleft()()
        fill()
        e.wait(lg='all')
        e.barrier()
        if o['pst']:
            self.stamp('xbar')
        self.rlimit = REND
        self.fill()
        e.s('s_or_b32', sT0, sJ, sW)
        e.s('s_cmp_lg_u32', sT0, 0)
        e.other('s_cbranch_scc1 L_nordy')
        sl0 = e.slot
        e.ins('s_mov_b64 exec, 1', w=['exec'], cls='salu')
        e.ins(f'buffer_store_byte {vOne}, {t[12]}, {sDBG}, {sI} offen sc1', r=[vOne, t[12], sDBG, sI], cls='vmem')
        e.ins('s_mov_b64 exec, -1', w=['exec'], cls='salu')
        e.label('L_nordy')
        e.slot = sl0
        wdma(o['pro_x'])
        mean, var, t0, t1 = YB[7][8], YB[7][9], YB[7][10], YB[7][11]
        inv = fh(1.0 / 576.0)
        e.v('v_mul_f32', mean, inv, SM[0])
        for d in range(8):
            e.v('v_cndmask_b32', G[d], G[2 * d], G[2 * d + 1])
        e.v('v_cvt_pk_bf16_f32', W[0], 0, f'-{mean}', extra_r=[mean])
        e.ins('s_mov_b32 vcc_lo, 0xffff0000', w=['vcc'], cls='salu')
        e.ins('s_mov_b32 vcc_hi, 0xffff0000', w=['vcc'], cls='salu')
        for d in range(1, 16):
            e.v('v_mov_b32', W[d], W[0])
        self.spawn('norm', self.th_norm(), 0)

        def nm():
            self.run(self.pick(('mfma',), allow_stall=True))
            wdma(1)

        def sel(d, a_, b_, m):
            e.ins(f'v_cndmask_b32_e64 {d}, {a_}, {b_}, {m}', w=[d], r=[a_, b_, m])
        for d in range(4):
            sel(G[d], G[2 * d], G[2 * d + 1], sApair)
            if d == 1:
                nm()
        e.ins(f's_mov_b32 {sApair[0]}, 0xf0f0f0f0', w=[sApair[0]], cls='salu')
        e.ins(f's_mov_b32 {sApair[1]}, 0xf0f0f0f0', w=[sApair[1]], cls='salu')
        for d in range(2):
            sel(G[d], G[2 * d], G[2 * d + 1], sYpair)
        e.v('v_cndmask_b32', var, G[0], G[1])
        e.v('v_mov_b32', t0, var)
        nm()
        e.v('v_permlane32_swap_b32', var, t0)
        sel(var, var, t0, sApair)
        e.v('v_mul_f32', var, inv, var)
        e.v('v_fma_f32', var, f'-{mean}', mean, var, extra_r=[mean])
        e.v('v_max_f32', var, 0, var)
        e.v('v_cvt_pk_bf16_f32', t1, 0, var)
        nm()
        e.v('v_add_f32', t1, fh(1e-5), t1)
        e.v('v_cvt_pk_bf16_f32', t1, 0, t1)
        e.v('v_sqrt_f32', t1, t1)
        s2 = [(pat, b0, k, off) for (pat, b0) in ((vWm, 0), (vWe, 16)) for k, off in ((0, 0), (2, 160), (4, 320), (6, 480), (10, 640))]
        for pat, b0, k, off in s2[:2]:
            e.ds('ds_read_b64_tr_b16', AS[b0 + k:b0 + k + 2], pat, off=off, tag='s2')
        e.v('v_cvt_pk_bf16_f32', t1, 0, t1)
        nm()
        e.v('v_rcp_f32', vRinv, t1)
        for pat, b0, k, off in s2[2:4]:
            e.ds('ds_read_b64_tr_b16', AS[b0 + k:b0 + k + 2], pat, off=off, tag='s2')
        e.v('v_fma_f32', t0, f'-{t1}', vRinv, 1.0, extra_r=[t1])
        e.v('v_fma_f32', vRinv, t0, vRinv, vRinv)
        for pat, b0, k, off in s2[4:]:
            e.ds('ds_read_b64_tr_b16', AS[b0 + k:b0 + k + 2], pat, off=off, tag='s2')
        if o['stamps']:
            e.v('v_mov_b32', vStm, self.vs)
            self.vs = vStm
        self.stamp('x')

    def tables(self, t, r8, p8, rho, ph, xs2):
        e = self.e
        o = self.o
        junk = t[67]
        e.s('s_lshl_b32', sWg, sI, 4)
        e.s('s_add_u32', sWg, sWg, sJ)
        e.s('s_mul_i32', sT0, sJ, 1296)
        e.v('v_lshl_add_u32', t[9], vTid, 2, sT0)
        z = W[12:16]
        for k in range(4):
            e.v('v_mov_b32', z[k], 0)
        e.s('s_lshl_b32', sFo, sWg, 8)
        e.v('v_lshlrev_b32', t[16], 4, vTid)
        e.v('v_lshlrev_b32', t[66], 20, vLane)
        e.ds('ds_write_b128', t[16], z, off=0, tag='z')
        e.v('v_min_u32', t[17], 6400 - 4096 - 16, t[16])
        e.ds('ds_write_b128', t[17], z, off=4096, tag='z')
        e.mark('k')
        self.srd(sWQ, S(6, 2), 1990656)
        self.srd(sW1, S(14, 2), 5308416)
        self.srd(sWP, S(8, 2), 20736)
        self.srd(sWS, S(22, 2), 1 << 28)
        self.srd(sWO, S(10, 2), 663552)
        self.srd(sW2, S(16, 2), 5308416)
        re = e.e

        def tlbs():
            for srd_ in (sWQ, sW1, sW2, sWO)[:o['tlb']]:
                re.bload('buffer_load_dword', junk, t[66], srd_, 0, tag='pf')

        def mems():
            re.bload('buffer_load_dword', t[10], t[9], sWP, 0, tag='wp')
            re.s('s_cmp_lg_u32', sJ, 0)
            re.other('s_cbranch_scc1 L_noclr')
            sl0 = re.slot
            re.ins(f'buffer_store_dwordx4 {z}, {t[16]}, {sWS}, {sFo} offen sc1', r=[z, t[16], sWS, sFo], cls='vmem')
            re.label('L_noclr')
            re.slot = sl0
            re.bload('buffer_load_dword', t[11], t[9], sWP, 0, off=1024, tag='wp')
        self.xtra = {o['pro_tk']: [tlbs]}
        self.xtra.setdefault(o['pro_mk'], []).append(mems)
        e.mark('mem')
        self.srd(sOUT, S(18, 2), 2359296)
        self.srd(sDBG, S(20, 2), 256)
        e.s('s_mov_b32', sMask, '0xffff0000')
        e.s('s_mov_b32', sOne, '0x01010101')
        e.v('v_lshlrev_b32', vL16, 4, vLane)
        e.v('v_mov_b32', vOne, 1)
        e.v('v_lshlrev_b32', vW4, 6, sW)
        xr = [t[44 + n] for n in range(4)]
        xr2 = [t[48 + n] for n in range(4)]
        hk, tk, r_, c4, g1 = t[19], t[20], t[21], t[22], t[23]
        a, b, c_ = t[24], t[25], t[26]
        e.v('v_lshrrev_b32', hk, 5, vLane)
        e.v('v_and_b32', tk, 31, vLane)
        e.v('v_bfe_u32', r_, vLane, 2, 2)
        e.v('v_and_b32', c4, 3, vLane)
        e.v('v_bfe_u32', g1, vLane, 4, 1)
        e.v('v_xor_b32', a, p8, hk)
        e.v('v_lshlrev_b32', b, 7, tk)
        e.v('v_lshl_add_u32', a, a, 4, b)
        e.s('s_add_u32', sT0, sM4, RB)
        e.s('s_add_u32', sT1, xs2, RB + 65536)
        e.v('v_add_u32', xr[0], sT0, a)
        e.v('v_add_u32', xr2[0], sT1, a)
        for kk in range(1, 4):
            e.v('v_xor_b32', xr[kk], 32 * kk, xr[0])
            e.v('v_xor_b32', xr2[kk], 32 * kk, xr2[0])
        e.v('v_bfe_u32', a, vLane, 2, 1)
        e.v('v_mov_b32', b, '0x3f803f80')
        e.ins(f'v_cmp_eq_u32 vcc, {a}, {g1}', w=['vcc'], r=[a, g1])
        for d in range(4):
            e.v('v_cndmask_b32', YB[7][4 + d], 0, b)
        if o['stamps']:
            e.v('v_mov_b32', YB[5][0], 0)
            e.ins(f'v_writelane_b32 {YB[5][0]}, s64, 0', w=[YB[5][0]], r=[YB[5][0]])
            e.ins(f'v_writelane_b32 {YB[5][0]}, s66, 60', w=[YB[5][0]], r=[YB[5][0]])
        e.mark('xr')
        e.s('s_mul_i32', sT1, sJ, 72)
        e.s('s_lshr_b32', sT2, sJ, 1)
        e.s('s_mul_i32', sT2, sT2, 1152)
        for kp in range(9):
            e.s('s_mul_i32', sQb[kp], rho, 64 * 3456)
            e.s('s_add_u32', sQb[kp], sQb[kp], sT1)
            e.s('s_mul_i32', s1b[kp], rho, 64 * 9216)
            e.s('s_add_u32', s1b[kp], s1b[kp], sT2)
            if kp < 8:
                self.inc9(rho)
        e.s('s_and_b32', sRg, ph, o['rgm'])
        e.s('s_lshr_b32', sR2, ph, 1)
        e.s('s_and_b32', sR2, sR2, 3)
        e.s('s_and_b32', sC, sJ, 1)
        e.s('s_mov_b32', sLog, fh(LOG2E))
        e.s('s_lshl_b32', sM1, sW, 10)
        e.s('s_lshl_b32', sM2, sW, 11)
        e.s('s_lshl_b32', sT0, sW, 2)
        e.v('v_subrev_u32', a, sT0, vLane)
        e.v('v_and_b32', a, 15, a)
        e.v('v_min_u32', a, 14, a)
        e.v('v_mul_u32_u24', b, 13, a)
        e.v('v_lshrrev_b32', b, 6, b)
        e.v('v_mul_u32_u24', c_, 1152 - 80, b)
        e.v('v_lshl_add_u32', a, a, 4, c_)
        e.v('v_lshrrev_b32', b, 4, vLane)
        e.v('v_mul_u32_u24', b, 4 * 3456, b)
        e.s('s_mul_i32', sT0, sW, 3456)
        e.v('v_add3_u32', vDQ[0], a, b, sT0)
        for kk in range(1, 4):
            e.v('v_add_u32', vDQ[kk], kk * (16 * 3456 - 1024), vDQ[0])
        e.v('v_xor_b32', a, sC, g1)
        e.v('v_lshlrev_b32', a, 2, a)
        e.v('v_xor_b32', a, a, p8)
        e.v('v_mul_u32_u24', b, 9216, r8)
        e.v('v_lshl_add_u32', a, a, 4, b)
        c5 = sFp
        e.s('s_mul_i32', c5, sC, 5)
        e.s('s_add_u32', sT0, sRg, c5)
        e.s('s_lshl_b32', sT0, sT0, 7)
        e.s('s_mul_i32', sT3, sW, 16 * 9216)
        e.s('s_add_u32', sT0, sT0, sT3)
        e.v('v_add_u32', vD1[0], sT0, a)
        for c in range(1, 4):
            e.v('v_add_u32', vD1[c], c * (8 * 9216 - 1024), vD1[0])
        e.mark('w')
        e.s('s_add_u32', sT1, sRg, 1)
        e.s('s_and_b32', sT1, sT1, 3)
        e.s('s_add_u32', sT1, sT1, c5)
        e.s('s_lshl_b32', sT1, sT1, 7)
        e.s('s_cmp_lt_u32', sW, 2)
        e.s('s_cselect_b32', sT1, sT1, 512)
        e.s('s_and_b32', sT2, sW, 1)
        e.s('s_mul_i32', sT2, sT2, 32 * 9216)
        e.s('s_add_u32', sT1, sT1, sT2)
        e.s('s_add_u32', sT2, sRg, 2)
        e.s('s_and_b32', sT2, sT2, 3)
        e.s('s_add_u32', sT2, sT2, c5)
        e.s('s_lshl_b32', sT2, sT2, 7)
        e.s('s_add_u32', sT2, sT2, sT3)
        e.s('s_sub_u32', sT2, sT2, sT1)
        e.s('s_sub_u32', sT1, sT1, sT0)
        e.s('s_xor_b32', sFp, sFo, 256)
        sU_ = sPo[2]
        e.v('v_lshlrev_b32', a, 5, g1)
        e.v('v_lshl_add_u32', a, r_, 7, a)
        e.v('v_lshl_add_u32', a, c4, 3, a)
        e.v('v_bfe_u32', b, vLane, 3, 1)
        e.v('v_lshl_add_u32', a, b, 6, a)
        e.v('v_lshl_add_u32', vP1[0][0], hk, 10, a)
        e.v('v_xor_b32', vP1[1][0], 64, vP1[0][0])
        e.v('v_add_u32', vP1[0][1], HIW, vP1[0][0])
        e.v('v_add_u32', vP1[1][1], HIW, vP1[1][0])
        ap, hp, ch = t[27], t[28], t[29]
        e.v('v_lshrrev_b32', a, 1, c4)
        e.v('v_lshl_add_u32', ap, g1, 1, a)
        e.v('v_and_b32', hp, 1, c4)
        e.v('v_mul_u32_u24', ch, 5, hp)
        e.v('v_add_u32', ch, ch, ap)
        e.v('v_lshlrev_b32', b, 12, r_)
        e.v('v_lshl_add_u32', b, hk, 9, b)
        for tl in range(4):
            if tl < 3:
                e.v('v_lshl_add_u32', a, r_, 3, ch)
                e.v('v_add_u32', a, 10 * tl, a)
            else:
                e.v('v_min_u32', a, 2, ap)
                e.v('v_mul_u32_u24', a, 10, a)
                e.v('v_lshl_add_u32', a, r_, 3, a)
                e.v('v_add_u32', a, 4, a)
            e.v('v_and_b32', a, 31, a)
            e.v('v_lshl_add_u32', vAQ[tl][0], a, 3, b)
            e.v('v_add_u32', vAQ[tl][1], HIW, vAQ[tl][0])
        e.v('v_mul_u32_u24', a, 40, r_)
        e.v('v_mov_b32', c_, L_ZERO)
        for (pm, pe, base, hs) in ((vWm, vWe, L_WP, 800), (vKm, vKe, L_KVS, 1600)):
            e.v('v_mul_u32_u24', b, hs, hk)
            e.v('v_add_u32', b, b, a)
            if base:
                e.v('v_add_u32', b, base, b)
            e.v('v_lshl_add_u32', pm, ap, 3, b)
            e.v('v_add_u32', pe, 32, b)
            e.ins(f'v_cmp_eq_u32 vcc, {hk}, {hp}', w=['vcc'], r=[hk, hp])
            e.v('v_cndmask_b32', pm, c_, pm)
            e.v('v_cndmask_b32', pe, c_, pe)
            e.ins(f'v_cmp_eq_u32 vcc, 0, {ap}', w=['vcc'], r=[ap])
            e.v('v_cndmask_b32', pe, c_, pe)
        e.s('s_mul_i32', sT0, sW, 32 * 240)
        e.s('s_add_u32', sT0, sT0, L_T)
        e.v('v_mul_u32_u24', vTw, 240, tk)
        e.v('v_mul_u32_u24', a, 120, hk)
        e.v('v_add3_u32', vTw, vTw, a, sT0)
        e.v('v_lshl_add_u32', a, hk, 3, r_)
        e.v('v_mul_u32_u24', a, 240, a)
        e.v('v_lshl_add_u32', a, g1, 5, a)
        e.v('v_lshl_add_u32', a, c4, 3, a)
        e.s('s_lshr_b32', sT0, sW, 1)
        e.s('s_mul_i32', sT0, sT0, 120)
        e.s('s_add_u32', sT0, sT0, L_T)
        e.s('s_add_u32', sU_, sT0, 80)
        e.v('v_add_u32', vTa, sU_, a)
        e.s('s_and_b32', sU_, sW, 1)
        e.s('s_mul_i32', sU_, sU_, 40)
        e.s('s_add_u32', sU_, sU_, sT0)
        e.v('v_add_u32', vTb, sU_, a)
        e.s('s_mul_i32', sT0, sW, 2 * OWN)
        e.v('v_mul_u32_u24', a, OWN, g1)
        e.v('v_and_b32', b, 15, vLane)
        e.v('v_lshl_add_u32', a, b, 4, a)
        e.v('v_lshl_add_u32', a, hk, 8, a)
        e.v('v_add_u32', vPst, sT0, a)
        e.v('v_bfe_u32', a, vLane, 2, 1)
        e.v('v_bfe_u32', b, vLane, 3, 1)
        e.v('v_bfe_u32', c_, vLane, 1, 1)
        e.v('v_lshl_add_u32', b, b, 1, c_)
        e.v('v_and_b32', c_, 1, vLane)
        e.v('v_lshlrev_b32', c_, 4, c_)
        e.v('v_mov_b32', t[30], '0x3f80')
        e.v('v_lshlrev_b32', c_, c_, t[30])
        e.ins(f'v_cmp_eq_u32 vcc, {a}, {hk}', w=['vcc'], r=[a, hk])
        e.v('v_cndmask_b32', c_, 0, c_)
        e.v('v_lshl_add_u32', b, g1, 2, b)
        for d in range(8):
            e.ins(f'v_cmp_eq_u32 vcc, {d}, {b}', w=['vcc'], r=[b])
            e.v('v_cndmask_b32', V(32 + d), 0, c_)
        for f in self.tab2_pre():
            f()
        wpd = [t[31], t[32]]
        for rnd in range(2):
            idx, row, col, dst = t[24], t[25], t[26], wpd[rnd]
            e.v('v_add_u32', idx, 256 * rnd, vTid)
            e.v('v_min_u32', idx, 323, idx)
            e.v('v_mul_u32_u24', row, 7282, idx)
            e.v('v_lshrrev_b32', row, 16, row)
            e.v('v_mul_u32_u24', col, 9, row)
            e.v('v_sub_u32', col, idx, col)
            e.v('v_add_u32', idx, 20, row)
            e.v('v_subrev_u32', dst, 18, row)
            e.ins(f'v_cmp_gt_u32 vcc, 2, {dst}', w=['vcc'], r=[dst])
            e.v('v_cndmask_b32', row, row, idx)
            e.v('v_mul_u32_u24', dst, 40, row)
            e.v('v_lshl_add_u32', dst, col, 2, dst)
        e.ins(f'v_cmp_gt_u32 vcc, 68, {vTid}', w=['vcc'], r=[vTid])
        e.v('v_mov_b32', t[24], LDS_BYTES - 16)
        e.v('v_cndmask_b32', wpd[1], t[24], wpd[1])
        e.mark('wpd')
        for zz in (8, 9, 12, 13, 24, 25, 28, 29):
            e.v('v_accvgpr_write_b32', AS[zz], 0)
        for r, v_ in (('vcc_lo', 0xaaaaaaaa), ('vcc_hi', 0xaaaaaaaa), (sApair[0], 0xcccccccc), (sApair[1], 0xcccccccc),
                      (sYpair[0], 0xff00ff00), (sYpair[1], 0xff00ff00)):
            e.ins(f's_mov_b32 {r}, {hex(v_)}', w=['vcc' if isinstance(r, str) else r], cls='salu')
        for f in self.pf_setup():
            f()
        e.mark('xend')
        e.s('s_lshl_b32', sT0, sWg, 2)
        e.s('s_add_u32', sT0, sT0, sW)
        e.s('s_mul_i32', sHo, sT0, HXW)
        e.s('s_add_u32', sHo, sHo, WS_HX)
        e.s('s_xor_b32', sT0, sT0, 4)
        e.s('s_mul_i32', sHi, sT0, HXW)
        e.s('s_add_u32', sHi, sHi, WS_HX)
        e.s('s_lshl_b32', sT0, sI, 1)
        e.s('s_add_u32', sT0, sT0, sC)
        e.s('s_mul_i32', sT0, sT0, 8 * OWN)
        e.s('s_lshr_b32', sU_, sJ, 1)
        e.s('s_mul_i32', sU_, sU_, 9216)
        e.s('s_add_u32', sT0, sT0, sU_)
        for g in range(3):
            e.s('s_add_u32', sPo[g], sT0, WS_PART + 4096 * g)
        for f in self.clr_setup():
            f()

    def pack(self, d, a, b):
        return lambda: self.e.v('v_cvt_pk_bf16_f32', d, a, b)

    def v(self, *a, **k):
        return lambda: self.e.v(*a, **k)

    def s(self, *a):
        return lambda: self.e.s(*a)

    def flag(self, idx):
        e = self.e

        def f():
            e.ins('s_mov_b64 exec, 1', w=['exec'], cls='salu')
            e.bstore('buffer_store_dword', vOne, vW4, sWS, sFo, off=4 * idx, flags='sc1', tag='fl')
            e.ins('s_mov_b64 exec, -1', w=['exec'], cls='salu')
        return f

    def data(self, gen):
        for op in gen:
            if not isinstance(op, tuple):
                try:
                    op.data = True
                except AttributeError:
                    pass
            yield op

    def th_norm(self):
        e = self.e
        C, D = W[0:16], [W[16:32], W[32:48]]
        tt = [W[48], W[49]]

        def mm(n):
            d = D[n & 1]
            yield lambda: e.mfma(d, PL, X[8 * n:8 * n + 4], C)
            yield lambda: e.mfma(d, PH, X[8 * n + 4:8 * n + 8], d)

        yield from mm(0)
        for n in range(18):
            if n + 1 < 18:
                yield from mm(n + 1)
            d = D[n & 1]
            for q in range(8):
                t = tt[q & 1]
                yield from self.data([self.pack(d[2 * q], 0, d[2 * q]),
                                      self.pack(d[2 * q + 1], 0, d[2 * q + 1]),
                                      self.v('v_mul_f32', d[2 * q], d[2 * q], vRinv),
                                      self.v('v_mul_f32', d[2 * q + 1], d[2 * q + 1], vRinv),
                                      self.pack(t, d[2 * q], d[2 * q + 1]),
                                      self.v('v_accvgpr_write_b32', X[8 * n + q], t)])
                if q == 3:
                    yield ('set', f'norm{2 * n}')
            yield ('set', f'norm{2 * n + 1}')
        yield ('set', 'normdone')

    def poll(self, vaddr, srd, soff, imm, vt, spair, expect=1, delay=None):
        e = self.e
        tag = ('poll', e.newlabel('p'))
        slow, back = e.newlabel('L_slow'), e.newlabel('L_back')
        sidx = self.nslow
        self.nslow += 1
        self.slow_names.append(self.stepno)

        def ld():
            e.bload('buffer_load_dword', vt, vaddr, srd, soff, off=imm, flags='sc1', tag=tag)

        def cmpf():
            e.ins(f'v_cmp_ne_u32_e64 {spair}, {expect}, {vt}', w=[spair], r=[vt, expect])

        def br():
            e.ins(f's_cmp_lg_u64 {spair}, 0', w=['scc'], r=[spair], cls='salu')
            e.other(f's_cbranch_scc1 {slow}')
            e.label(back)

        yield ld
        yield ('delay', self.o['d_poll'] if delay is None else delay)
        yield lambda: e.wait(vm=[tag])
        yield cmpf
        yield ('delay', 1)
        yield br

        def slowpath():
            e.label(slow)
            e.s('s_mov_b32', sCnt, 0)
            lp = e.newlabel('L_spin')
            e.label(lp)
            if self.o['stamps']:
                e.s('s_add_u32', sCnt, sCnt, 1)
                e.ins(f'v_writelane_b32 {vStm}, {sCnt}, {48 + sidx}', w=[vStm], r=[vStm, sCnt])
                e.s('s_sub_u32', sCnt, sCnt, 1)
            e.other('s_sleep 4')
            ld()
            e.other('s_waitcnt vmcnt(0)')
            e.vmq = []
            cmpf()
            e.nop(4)
            e.ins(f's_cmp_eq_u64 {spair}, 0', w=['scc'], r=[spair], cls='salu')
            e.other(f's_cbranch_scc1 {back}')
            e.s('s_add_u32', sCnt, sCnt, 1)
            e.s('s_cmp_lt_u32', sCnt, 1 << 18)
            e.other(f's_cbranch_scc1 {lp}')
            e.other(f's_branch {back}')
        self.slow.append(slowpath)

    def th_ready(self):
        va, vt = YB[8][10], YB[8][11]
        yield ('until', self.o['rdy0'])
        yield from self.poll(va, sDBG, 0, 0, vt, sYpair, expect=sOne, delay=40)
        yield ('set', 'rdy')

    def clr_setup(self):
        m1, va = YB[8][0:4], YB[8][8:10]
        a, b, c = YB[8][12], YB[8][13], YB[8][14]
        for d in range(4):
            yield self.v('v_mov_b32', m1[d], -1)
        yield self.s('s_lshl_b32', sA0, sJ, 2)
        yield self.s('s_add_u32', sA0, sA0, sW)
        yield self.s('s_lshl_b32', sA1, sA0, 15)
        yield self.s('s_add_u32', sA1, sA1, WS_KVP)
        yield self.v('v_lshlrev_b32', va[1], 2, vLane)
        yield self.v('v_and_b32', YB[8][5], 15, vLane)
        yield self.v('v_lshl_add_u32', YB[8][5], YB[8][5], 12, vW4)
        yield self.v('v_and_b32', a, 3, vLane)
        yield self.v('v_lshlrev_b32', YB[8][10], 2, a)
        yield self.v('v_lshrrev_b32', b, 2, vLane)
        yield self.v('v_lshlrev_b32', c, 11, b)
        yield self.v('v_lshl_add_u32', YB[8][6], a, 4, c)
        yield self.v('v_lshl_add_u32', YB[8][7], a, 3, c)
        yield self.v('v_lshlrev_b32', c, 7, b)
        yield self.v('v_lshl_add_u32', b, a, 4, c)
        yield self.v('v_accvgpr_write_b32', HPa[43], b)
        yield self.v('v_lshl_add_u32', b, a, 3, c)
        yield self.v('v_accvgpr_write_b32', HPa[44], b)
        yield self.s('s_lshr_b32', sA0, sW, 1)
        yield self.s('s_mul_i32', sA0, sA0, 160)
        yield self.s('s_mul_i32', sR0, sW, 720)
        yield self.s('s_add_u32', sA0, sA0, sR0)
        yield self.v('v_min_u32', b, 44, vLane)
        yield self.v('v_lshl_add_u32', b, b, 4, sA0)
        yield self.v('v_accvgpr_write_b32', HPa[46], b)
        yield self.s('s_lshl_b32', sR0, sJ, 12)
        yield self.s('s_add_u32', sA0, sA0, sR0)
        yield self.s('s_add_u32', sA0, sA0, WS_KVF)
        yield self.v('v_lshrrev_b32', b, 4, vLane)
        yield self.v('v_lshl_add_u32', c, a, 2, b)
        yield self.v('v_and_b32', b, 1, b)
        yield self.v('v_lshl_add_u32', b, a, 1, b)
        yield self.v('v_add_u32', b, 16, b)
        yield self.v('v_sub_u32', b, b, c)
        yield self.v('v_bfe_u32', a, vLane, 2, 1)
        yield self.v('v_mad_i32_i24', c, a, b, c)
        yield self.v('v_lshl_add_u32', c, c, 1, sA0)
        yield self.v('v_accvgpr_write_b32', HPa[45], c)
        yield self.s('s_min_u32', sR0, sI, 14)
        yield self.s('s_mul_i32', sR0, sR0, 48)
        yield self.s('s_add_u32', sA0, sA0, sR0)
        yield self.v('v_min_u32', va[0], 11, vLane)
        yield self.v('v_lshl_add_u32', va[0], va[0], 2, sA0)
        yield self.v('v_and_b32', a, 31, vLane)
        yield self.v('v_lshrrev_b32', b, 5, vLane)
        yield self.v('v_mad_u32_u24', a, a, 5, b)
        for n in range(3):
            if n:
                yield self.v('v_add_u32', a, 2, a)
            yield self.v('v_mul_u32_u24', b, 43, a)
            yield self.v('v_lshrrev_b32', b, 8, b)
            yield self.v('v_mul_u32_u24', b, 2048 - 96, b)
            yield self.v('v_lshl_add_u32', b, a, 4, b)
            yield self.v('v_accvgpr_write_b32', HPa[40 + n], b)
        yield self.s('s_lshl_b32', sA0, sI, 7)
        yield self.s('s_add_u32', sA0, sA0, sA1)
        yield self.s('s_add_u32', sR0, sHo, 18432)

    def clr_ops(self):
        e = self.e
        m1, va = YB[8][0:4], YB[8][8:10]
        sfl = 'sc1'
        dl = self.o['d_clr']
        yield lambda: e.bstore('buffer_store_dwordx4', m1, YB[8][6], sWS, sA0, flags=sfl, tag='clr')
        yield ('delay', dl)
        yield lambda: e.bstore('buffer_store_dwordx2', m1[0:2], YB[8][7], sWS, sA0, off=64, flags=sfl, tag='clr')
        yield lambda: e.bstore('buffer_store_dword', m1[0], va[0], sWS, 0, flags=sfl, tag='clr')
        yield ('set', 'clrk')
        yield ('delay', dl)
        for of in (0, 1024):
            yield lambda of=of: e.bstore('buffer_store_dwordx4', m1, vL16, sWS, sR0, off=of, flags=sfl, tag='clr2')
            yield ('delay', dl)
        yield lambda: e.bstore('buffer_store_dword', m1[0], va[1], sWS, sR0, off=2048, flags=sfl, tag='clr2')
        for g, of in [(2, 0), (2, 512)] + ([(1, 512 * n) for n in range(8)] if self.o['rs1'] else []):
            yield ('delay', dl)
            yield lambda of=of, g=g: e.bstore('buffer_store_dwordx4', m1, vPst, sWS, sPo[g], off=of, flags=sfl, tag='clr2')
        yield ('delay', 4)
        yield ('set', 'clr2')

    def pf_setup(self):
        p1, t0, t1, pw = YB[7][12], YB[7][13], YB[7][14], YB[7][15]
        s0, s1 = sT0, sPo[2]
        yield self.s('s_and_b32', sPf, sI, 7)
        yield self.s('s_lshl_b32', s0, sPf, 1)
        yield self.s('s_add_u32', s0, s0, sC)
        yield self.s('s_lshl_b32', s0, s0, 2)
        yield self.s('s_add_u32', s0, s0, sW)
        yield self.s('s_mul_i32', s1, s0, 81)
        yield self.v('v_add_lshl_u32', pw, s1, vLane, 7)
        yield self.s('s_mul_i32', s0, s0, 9 * 9216)
        yield self.s('s_lshr_b32', s1, sJ, 1)
        yield self.s('s_mul_i32', s1, s1, 1152)
        yield self.s('s_add_u32', s0, s0, s1)
        yield self.v('v_min_u32', p1, 62, vLane)
        yield self.v('v_mul_u32_u24', t0, 37, p1)
        yield self.v('v_lshrrev_b32', t0, 8, t0)
        yield self.v('v_mul_u32_u24', t1, 7, t0)
        yield self.v('v_sub_u32', p1, p1, t1)
        yield self.v('v_lshrrev_b32', t1, 2, p1)
        yield self.v('v_add_lshl_u32', p1, p1, t1, 7)
        yield self.v('v_mul_u32_u24', t0, 9216, t0)
        yield self.v('v_add3_u32', p1, p1, t0, s0)

    def pf_slot(self, n, body):
        e = self.e

        def f():
            lb = f'L_pfs{e.uid}_{n}'
            if not e.dry:
                e.uid += 1
            e.s('s_cmp_lg_u32', sPf, n)
            e.other(f's_cbranch_scc1 {lb}')
            if not e.dry:
                sl0, q0 = e.slot, list(e.vmq)
                body()
                e.slot, e.vmq = sl0, q0
            e.label(lb)
        return f

    def th_pf1(self):
        e = self.e
        ev, gap, order = self.o['pf1']
        yield ('until', ev)
        for n in order:
            yield self.pf_slot(n, lambda: e.bload('buffer_load_dword', HPa[47], YB[7][12], sW1, 0, off=128, flags=self.o['pfl']))
            yield ('delay', gap)
        yield ('set', 'pf1')

    def th_pf(self):
        e = self.e
        pa, pj = vRinv, HPa[47]
        ev, gap, order = self.o['pf2']
        yield ('until', 'normdone')
        yield self.v('v_mov_b32', pa, YB[7][15])
        yield ('set', 'pfa')
        yield ('until', ev)

        def body(n):
            for srd, sz in ((sW2, 5184 * 128), (sWO, 648 * 128))[:2 if n == 0 and self.o['pfo'] else 1]:
                e.s('s_lshr_b32', sCnt, sJ, 1)
                e.s('s_mul_i32', sCnt, sCnt, sz)
                e.bload('buffer_load_dword', pj, pa, srd, sCnt, flags=self.o['pfl'])
                e.s('s_add_u32', sCnt, sCnt, 8192)
                e.ins('s_mov_b64 exec, 0x1ffff', w=['exec'], cls='salu')
                e.bload('buffer_load_dword', pj, pa, srd, sCnt, flags=self.o['pfl'])
                e.ins('s_mov_b64 exec, -1', w=['exec'], cls='salu')
        for n in order:
            yield self.pf_slot(n, lambda n=n: body(n))
            yield ('delay', gap)
        yield ('set', 'pf')

    def th_clr(self):
        e = self.e
        yield ('until', 'clrk')
        yield ('delay', 40)
        yield lambda: e.wait(vm='clr')
        yield ('until', 'rdy')
        yield self.flag(0)
        yield self.s('s_lshl_b32', sYpair[0], sJ, 8)
        yield ('delay', self.o['d_kvr'])
        yield from self.poll(YB[8][5], sWS, sYpair[0], 0, YB[8][4], sApair, delay=40)
        yield ('set', 'clr')

    def check(self, cmpf, spair, redo):
        e = self.e
        slow, back = e.newlabel('L_slow'), e.newlabel('L_back')
        sidx = self.nslow
        self.nslow += 1
        self.slow_names.append(self.stepno)

        def br():
            e.ins(f's_cmp_lg_u64 {spair}, 0', w=['scc'], r=[spair], cls='salu')
            e.other(f's_cbranch_scc1 {slow}')
            e.label(back)
        yield cmpf
        yield ('delay', 1)
        yield br

        def slowpath():
            e.label(slow)
            e.s('s_mov_b32', sCnt, 0)
            lp = e.newlabel('L_spin')
            e.label(lp)
            if self.o['stamps']:
                e.s('s_add_u32', sCnt, sCnt, 1)
                e.ins(f'v_writelane_b32 {vStm}, {sCnt}, {48 + sidx}', w=[vStm], r=[vStm, sCnt])
                e.s('s_sub_u32', sCnt, sCnt, 1)
            e.other('s_sleep 2')
            e.vmq = []
            redo()
            e.vmq = []
            e.fence_all()
            cmpf()
            e.nop(4)
            e.ins(f's_cmp_eq_u64 {spair}, 0', w=['scc'], r=[spair], cls='salu')
            e.other(f's_cbranch_scc1 {back}')
            e.s('s_add_u32', sCnt, sCnt, 1)
            e.s('s_cmp_lt_u32', sCnt, 1 << 16)
            e.other(f's_cbranch_scc1 {lp}')
            e.other(f's_branch {back}')
        self.slow.append(slowpath)

    def softmax(self, *a):
        return self.data(self.softmax_(*a))

    def softmax_(self, p, em, tmp, outp, outm):
        t0, t1, mx, mn = tmp
        for k in range(18):
            yield self.pack(p[k], 0, p[k])
        yield self.v('v_max_f32', mx, p[0], p[1])
        yield self.v('v_min_f32', mn, p[0], p[1])
        for k in range(1, 9):
            yield self.v('v_max3_f32', mx, mx, p[2 * k], p[2 * k + 1])
            yield self.v('v_min3_f32', mn, mn, p[2 * k], p[2 * k + 1])
        yield self.v('v_mul_f32', mx, sLog, mx)
        yield self.v('v_mul_f32', mn, sLog, mn)
        for k in range(18):
            yield self.v('v_fma_f32', em[k], f'-{p[k]}', sLog, mn, extra_r=[p[k]])
            yield self.v('v_fma_f32', p[k], p[k], sLog, f'-{mx}', extra_r=[mx])
        for k in range(18):
            yield self.v('v_exp_f32', em[k], em[k])
            yield self.v('v_exp_f32', p[k], p[k])
        yield self.v('v_add_f32', t1, em[0], em[1])
        yield self.v('v_add_f32', t0, p[0], p[1])
        for k in range(2, 18):
            yield self.v('v_add_f32', t1, t1, em[k])
            yield self.v('v_add_f32', t0, t0, p[k])
        yield self.v('v_rcp_f32', t1, t1)
        yield self.v('v_rcp_f32', t0, t0)
        for k in range(18):
            yield self.v('v_mul_f32', em[k], em[k], t1)
        for k in range(18):
            yield self.v('v_mul_f32', p[k], p[k], t0)
        for k in range(9):
            yield self.pack(outp[k], p[2 * k], p[2 * k + 1])
        for k in range(9):
            yield self.pack(outm[k], em[2 * k], em[2 * k + 1])

    def rdpack(self, *a):
        return self.data(self.rdpack_(*a))

    def rdpack_(self, dst, a0, a1, t0, t1):
        if a0.k == 'a':
            yield self.v('v_accvgpr_read_b32', t0, a0)
            yield self.v('v_accvgpr_read_b32', t1, a1)
            a0, a1 = t0, t1
        yield self.pack(dst, a0, a1)

    def th_attn(self):
        e = self.e
        o = self.o
        Pk, Px, Pq = W[0:16], W[16:32], W[32:48]
        KF, EF, QF = W[48:56], W[56:60], W[60:70]
        r0, r1, r2, r3 = W[0], W[1], W[2], W[3]
        q, k, vv, ex = QA
        yield ('until', 'qkv')
        yield ('until', 'normdone')
        yield ('until', 'clr')
        yield ('until', 'tab2v')
        for d in range(8):
            yield from self.rdpack(KF[d], k[2 * d], k[2 * d + 1], W[32 + 2 * (d & 1)], W[33 + 2 * (d & 1)])
        for d in range(4):
            yield from self.rdpack(EF[d], ex[2 * d], ex[2 * d + 1], W[32 + 2 * (d & 1)], W[33 + 2 * (d & 1)])
        VV = QF
        yield from self.rdpack(VV[8], ex[8], ex[9], W[32], W[33])
        yield from self.rdpack(VV[9], ex[10], ex[11], W[34], W[35])
        yield ('set', 'kxread')
        yield lambda: e.wait(lg='s2')
        yield lambda: e.mfma(Pk, AS[0:4], KF[0:4], 0)
        yield lambda: e.mfma(Px, AS[16:20], KF[0:4], 0)
        yield lambda: e.mfma(Pk, AS[4:8], KF[4:8], Pk)
        yield lambda: e.mfma(Px, AS[20:24], KF[4:8], Px)
        yield lambda: e.mfma(Pk, AS[8:12], EF, Pk)
        yield lambda: e.mfma(Px, AS[24:28], EF, Px)
        for d in range(8):
            yield from self.rdpack(VV[d], vv[2 * d], vv[2 * d + 1], W[32 + 2 * (d & 1)], W[33 + 2 * (d & 1)])

        def selx():
            e.ins(f'v_cmp_gt_u32_e64 {sApair}, 32, {vLane}', w=[sApair], r=[vLane])
            e.ins(f'v_cndmask_b32_e64 {VV[8]}, {VV[9]}, {VV[8]}, {sApair}', w=[VV[8]], r=[VV[8], VV[9], sApair])
        yield selx
        yield self.v('v_mov_b32', VV[9], '0x3f80')
        if self.dbg == 'kv':
            yield lambda: None if e.dry else self.dump([KF[d] for d in range(8)] + [EF[d] for d in range(4)] + [VV[d] for d in range(10)])
            return
        for d in range(5):
            yield lambda d=d: e.ds('ds_write_b64', vTw, VV[2 * d:2 * d + 2], off=80 + 8 * d, tag='tw')
        yield self.v('v_mov_b32', W[48], Px[0])
        yield self.v('v_mov_b32', W[49], Px[1])
        yield lambda: e.wait(lg='tw')
        for d in range(8):
            yield from self.rdpack(QF[d], q[2 * d], q[2 * d + 1], W[32 + 2 * (d & 1)], W[33 + 2 * (d & 1)])
        yield ('set', 'qaread')
        yield lambda: e.mfma(Pq, AS[0:4], QF[0:4], 0)
        yield lambda: e.mfma(Px, AS[16:20], QF[0:4], 0)
        yield lambda: e.mfma(Pq, AS[4:8], QF[4:8], Pq)
        yield lambda: e.mfma(Px, AS[20:24], QF[4:8], Px)
        yield lambda: e.mfma(Pq, AS[10:14], EF, Pq)
        yield lambda: e.mfma(Px, AS[26:30], EF, Px)
        yield ('set', 'pqm')
        sm = self.softmax([Pk[d] for d in range(16)] + [W[48], W[49]], [Px[d] for d in range(16)] + [W[52], W[53]],
                          [W[54], W[55], W[60], W[61]], [Pk[d] for d in range(9)], [Px[d] for d in range(9)])
        if self.dbg == 'p':
            yield self.v('v_mov_b32', W[50], Px[0])
            yield self.v('v_mov_b32', W[51], Px[1])
            yield lambda: None if e.dry else self.dump([Pk[d] for d in range(16)] + [W[48], W[49]] + [Pq[d] for d in range(16)] + [W[50], W[51]])
            return
        for n, op in enumerate(sm):
            if n == 31:
                yield self.v('v_mov_b32', W[50], Px[0])
                yield self.v('v_mov_b32', W[51], Px[1])
            yield op
        yield self.v('v_mov_b32', Pk[9], 0)
        yield self.v('v_mov_b32', Px[9], 0)
        for d in range(5):
            yield lambda d=d: e.ds('ds_write_b64', vTw, Pk[2 * d:2 * d + 2], off=8 * d, tag='tw')
            yield lambda d=d: e.ds('ds_write_b64', vTw, Px[2 * d:2 * d + 2], off=40 + 8 * d, tag='tw')
        ka = [YB[3][n] for n in range(7)]
        for n in range(3):
            yield self.v('v_accvgpr_read_b32', ka[n], HPa[40 + n])
        yield ('delay', 2)

        def bar():
            e.wait(lg='tw')
            e.barrier()
        yield bar
        KV = Pk
        for ks in range(8 + 3):
            if ks < 8:
                fa, fb = AS[8 * (ks % 4):8 * (ks % 4) + 4], AS[8 * (ks % 4) + 4:8 * (ks % 4) + 8]
                of = ks * 16 * 240
                yield lambda fa=fa, of=of, ks=ks: e.ds('ds_read_b64_tr_b16', fa[0:2], vTa, off=of, tag=('kv', ks))
                yield lambda fa=fa, of=of, ks=ks: e.ds('ds_read_b64_tr_b16', fa[2:4], vTa, off=of + 960, tag=('kv', ks))
                yield lambda fb=fb, of=of, ks=ks: e.ds('ds_read_b64_tr_b16', fb[0:2], vTb, off=of, tag=('kv', ks))
                yield lambda fb=fb, of=of, ks=ks: e.ds('ds_read_b64_tr_b16', fb[2:4], vTb, off=of + 960, tag=('kv', ks))
            else:
                yield ('delay', 1)
            m = ks - 3
            if m >= 0:
                yield lambda m=m: e.wait(lg=[('kv', m)])
                yield lambda m=m: e.mfma(KV, AS[8 * (m % 4):8 * (m % 4) + 4], AS[8 * (m % 4) + 4:8 * (m % 4) + 8], 0 if m == 0 else KV)
        yield ('set', 'tread')
        yield ('spawn', 'smq', self.th_smq(), self.o['prio'][3])
        yield ('delay', 2)

        def kvst():
            e.ins('s_mov_b64 exec, 0x3ffff', w=['exec'], cls='salu')
            e.bstore('buffer_store_dwordx4', KV[8:12], ka[2], sWS, sA0, flags='sc1', tag='kvst')
            e.ins('s_mov_b32 exec_hi, 0x3ffff', w=['exec'], cls='salu')
            e.bstore('buffer_store_dwordx4', KV[0:4], ka[0], sWS, sA0, flags='sc1', tag='kvst')
            e.bstore('buffer_store_dwordx4', KV[4:8], ka[1], sWS, sA0, flags='sc1', tag='kvst')
            e.ins('s_mov_b64 exec, -1', w=['exec'], cls='salu')
        yield kvst
        yield ('set', 'kvflag')
        t_g = self.stepno
        for n in range(3, 7):
            yield self.v('v_accvgpr_read_b32', ka[n], HPa[40 + n])
        yield ('set', 'gsum')
        yield self.s('s_min_u32', sA0, sI, 14)
        yield self.s('s_lshl_b32', sA0, sA0, 11)
        yield self.s('s_add_u32', sA0, sA0, sA1)
        yield self.s('s_min_u32', sA1, sI, 14)
        yield self.s('s_mul_i32', sA1, sA1, 48)
        yield ('delay', max(1, o['d_kv'] - (self.stepno - t_g)))
        yield ('set', 'kvpolled')
        A_, B_ = YB[3][8:12], YB[3][12:14]

        def gl():
            yield lambda: e.bload('buffer_load_dwordx4', A_, ka[3], sWS, sA0, flags='sc1', tag='kvl')
            yield lambda: e.bload('buffer_load_dwordx2', B_, ka[4], sWS, sA0, off=64, flags='sc1', tag='kvl')

        def sel(d, a_, b_):
            return lambda: e.ins(f'v_cndmask_b32_e64 {d}, {a_}, {b_}, {sApair}', w=[d], r=[a_, b_, sApair])

        def dpp(d, a_, b_, n):
            return lambda: e.ins(f'v_add_f32_dpp {d}, {a_}, {b_} row_ror:{n} row_mask:0xf bank_mask:0xf', w=[d], r=[a_, b_], cls='perm')

        def gsum():
            yield self.s('s_mov_b32', sApair[0], '0xf0f0f0f0')
            yield self.s('s_mov_b32', sApair[1], '0xf0f0f0f0')
            for x_, y_ in ((A_[0], A_[1]), (A_[2], A_[3]), (B_[0], B_[1])):
                yield self.v('v_permlane16_swap_b32', x_, y_)
            for x_, y_ in ((B_[0], B_[1]), (A_[0], A_[1]), (A_[2], A_[3])):
                yield self.v('v_add_f32', x_, x_, y_)
            yield self.v('v_mov_b32', B_[1], B_[0])
            yield self.v('v_permlane32_swap_b32', A_[0], A_[2])
            yield self.v('v_permlane32_swap_b32', B_[0], B_[1])
            yield self.v('v_add_f32', A_[0], A_[0], A_[2])
            yield self.v('v_add_f32', B_[0], B_[0], B_[1])
            yield sel(A_[2], B_[0], A_[0])
            yield sel(A_[1], A_[0], B_[0])
            yield dpp(A_[1], A_[2], A_[1], 4)
            yield dpp(A_[1], A_[1], A_[1], 8)
        yield from gl()
        yield ('delay', o['d_gl'])
        yield lambda: e.wait(vm='kvl')
        yield from gsum()

        def redo_kv():
            for f in gl():
                f()
            e.other('s_waitcnt vmcnt(0)')
            for f in gsum():
                f()
        yield from self.check(lambda: e.ins(f'v_cmp_u_f32_e64 {sApair}, {A_[1]}, {A_[1]}', w=[sApair], r=[A_[1]]), sApair, redo_kv)
        yield self.pack(A_[1], A_[1], A_[1])
        yield lambda: e.bstore('buffer_store_short', A_[1], ka[5], sWS, sA1, flags='sc1', tag='kvst')
        yield ('set', 'kv2')
        yield self.s('s_lshl_b32', sA0, sJ, 12)
        yield self.s('s_add_u32', sA0, sA0, WS_KVF)
        yield ('delay', o['d_kv2'])
        F_ = W[0:4]

        def fl():
            yield lambda: e.bload('buffer_load_dwordx4', F_, ka[6], sWS, sA0, flags='sc1', tag='kvf')

        def fchk():
            yield self.v('v_pk_max_u16', B_[0], F_[0], F_[1])
            yield self.v('v_pk_max_u16', B_[1], F_[2], F_[3])
            yield self.v('v_pk_max_u16', B_[0], B_[0], B_[1])
            yield self.v('v_lshlrev_b32', B_[1], 16, B_[0])
            yield self.v('v_max_u32', B_[0], B_[0], B_[1])
        yield from fl()
        yield ('delay', o['d_gl'])
        yield lambda: e.wait(vm='kvf')
        yield from fchk()

        def redo_f():
            for f in fl():
                f()
            e.other('s_waitcnt vmcnt(0)')
            for f in fchk():
                f()
        yield from self.check(lambda: e.ins(f'v_cmp_le_u32_e64 {sApair}, {sMask}, {B_[0]}', w=[sApair], r=[sMask, B_[0]]), sApair, redo_f)
        yield lambda: e.ds('ds_write_b128', ka[6], F_, off=L_KVS, tag='kvs')
        yield ('until', 'hf1')
        yield ('delay', 2)
        yield ('until', 'pq')

        def bar2():
            e.wait(lg='kvs')
            e.barrier()
        yield bar2
        N, Nx = W[0:16], W[16:32]
        PQ = W[32:52]
        fr = GB
        for t_ in range(5):
            for which, pat in ((0, vKm), (1, vKe)):
                f = fr[2 * t_ + which]
                yield lambda f=f, pat=pat, t_=t_: e.ds('ds_read_b64_tr_b16', f[0:2], pat, off=320 * t_, tag=('nd', t_))
                yield lambda f=f, pat=pat, t_=t_: e.ds('ds_read_b64_tr_b16', f[2:4], pat, off=320 * t_ + 160, tag=('nd', t_))
        yield ('delay', 2)
        for m in range(5):
            yield lambda m=m: e.wait(lg=[('nd', m)])
            yield lambda m=m: e.mfma(Nx, fr[2 * m + 1], PQ[4 * m:4 * m + 4], 0 if m == 0 else Nx)
            yield lambda m=m: e.mfma(N, fr[2 * m], PQ[4 * m:4 * m + 4], 0 if m == 0 else N)
        yield ('set', 'xlow')
        if self.dbg == 'num':
            yield lambda: None if e.dry else self.dump([N[d] for d in range(16)] + [Nx[d] for d in range(4)])
            return
        OF = self.OF
        yield ('until', 'hf2')
        den, t0 = Nx[4], Nx[5]
        yield self.pack(den, 0, Nx[2])
        yield self.v('v_add_f32', den, fh(1e-6), den)
        yield self.pack(den, 0, den)
        yield self.v('v_rcp_f32', t0, den)
        yield self.v('v_mov_b32', OF[10], 0)
        yield self.v('v_fma_f32', den, f'-{den}', t0, 1.0, extra_r=[den])
        yield self.v('v_fma_f32', t0, den, t0, t0)
        yield self.v('v_mov_b32', OF[11], 0)
        nums = [Nx[0], Nx[1]] + [N[d] for d in range(16)]
        for kk in range(9):
            tt = Nx[6 + (kk & 1)]
            a_, b_ = nums[2 * kk], nums[2 * kk + 1]
            yield self.pack(a_, 0, a_)
            yield self.pack(b_, 0, b_)
            yield self.v('v_mul_f32', a_, a_, t0)
            yield self.v('v_mul_f32', b_, b_, t0)
            yield self.pack(OF[8] if kk == 0 else OF[kk - 1], a_, b_)
        yield ('set', 'of')
        yield self.s('s_add_u32', sA0, sHo, 18432)
        yield self.v('v_lshlrev_b32', Nx[8], 2, vLane)
        yield lambda: e.bstore('buffer_store_dwordx4', OF[0:4], vL16, sWS, sA0, off=0, flags='sc1', tag='ost')
        yield lambda: e.bstore('buffer_store_dwordx4', OF[4:8], vL16, sWS, sA0, off=1024, flags='sc1', tag='ost')
        yield lambda: e.bstore('buffer_store_dword', OF[8], Nx[8], sWS, sA0, off=2048, flags='sc1', tag='ost')
        yield self.s('s_add_u32', sA0, sHi, 18432)
        yield ('delay', o['d_o'])

        def old_():
            yield lambda: e.bload('buffer_load_dwordx4', self.OP[0:4], vL16, sWS, sA0, off=0, flags='sc1', tag='old')
            yield lambda: e.bload('buffer_load_dwordx4', self.OP[4:8], vL16, sWS, sA0, off=1024, flags='sc1', tag='old')
            yield lambda: e.bload('buffer_load_dword', OF[9], Nx[8], sWS, sA0, off=2048, flags='sc1', tag='old')

        def ochk():
            OP = self.OP
            yield self.v('v_max3_u32', Nx[10], OP[0], OP[1], OP[2])
            yield self.v('v_max3_u32', Nx[11], OP[3], OP[4], OP[5])
            yield self.v('v_max3_u32', Nx[10], Nx[10], OP[6], OP[7])
            yield self.v('v_max3_u32', Nx[10], Nx[10], Nx[11], OF[9])
        yield ('until', 'hpol0')
        yield from old_()
        yield ('delay', o['d_load'])
        yield lambda: e.wait(vm='old')
        yield from ochk()

        def redo_o():
            for f in old_():
                f()
            e.other('s_waitcnt vmcnt(0)')
            for f in ochk():
                f()
        yield from self.check(lambda: e.ins(f'v_cmp_eq_u32_e64 {sApair}, -1, {Nx[10]}', w=[sApair], r=[Nx[10]]), sApair, redo_o)
        yield ('set', 'op')
        if self.dbg == 'o':
            yield lambda: None if e.dry else self.dump([OF[d] for d in range(12)] + [self.OP[d] for d in range(8)])

    def hflag(self, g, tag, vt, spair):
        e = self.e
        yield ('delay', self.o['d_ack'])
        yield lambda: e.wait(vm=tag)
        yield self.flag(1 + g)
        yield ('delay', self.o['d_vis'])
        yield from self.poll(vW4, sWS, sFp, 4 + 4 * g, vt, spair)

    def th_smq(self):
        Pq, Px = W[32:48], W[16:32]
        yield from self.softmax([Pq[d] for d in range(16)] + [W[50], W[51]], [Px[d] for d in range(16)] + [W[52], W[53]],
                                [W[54], W[55], W[60], W[61]], [W[32 + d] for d in range(9)], [W[41 + d] for d in range(9)])
        yield self.v('v_mov_b32', W[50], 0)
        yield self.v('v_mov_b32', W[51], 0)
        yield ('set', 'pq')

    def th_relu(self, g3):
        e = self.e
        if g3:
            yield ('until', f'hf{g3 - 1}')
        if True:
            yield ('until', f'acc{g3}')
            for t, acc in enumerate(FACC[g3]):
                Ts = HG[g3][0] + t
                for d in range(0, 8, 2):
                    yield self.pack(HS[Ts][d], acc[2 * d], acc[2 * d + 1])
                    yield self.pack(HS[Ts][d + 1], acc[2 * d + 2], acc[2 * d + 3])
                    yield self.v('v_pk_max_i16', HS[Ts][d], HS[Ts][d], 0)
                    yield self.v('v_pk_max_i16', HS[Ts][d + 1], HS[Ts][d + 1], 0)
                yield ('set', f'hr{Ts}')
            yield ('set', f'hf{g3}')

    def th_hst(self):
        e = self.e
        yield ('until', 'clr')
        yield ('until', 'clr2')
        for g3 in range(4):
            for Ts in range(*HG[g3]):
                yield ('until', f'hr{Ts}')
                yield self.s('s_add_u32', sR0, sHo, 2048 * Ts)
                for hh in range(2):
                    yield self.paced(lambda Ts=Ts, hh=hh, g3=g3: e.bstore('buffer_store_dwordx4', HS[Ts][4 * hh:4 * hh + 4], vL16, sWS, sR0,
                                                                          off=1024 * hh, flags=self.o['sfl'], tag=('hst', g3)))
            yield ('spawn', f'himp{g3}', self.th_himp(g3), self.o['prio'][4])

    def th_himp(self, g3):
        e = self.e
        yield ('until', 'rdy')
        yield ('until', 'tab2')
        yield ('until', 'pqm')
        if g3 == 1:
            yield ('until', 'pf')
        if g3 == 3:
            yield ('until', 'hp0')
        yield from self.hflag(g3, [('hst', g3)], W[66 + g3], sHp[g3])
        yield ('set', f'hpol{g3}')
        if g3 >= 2:
            yield ('until', 'gsum')
            yield ('until', 'pf')
        for Ts in range(*HG[g3]):
            yield self.s('s_add_u32', sHs[g3], sHi, 2048 * Ts)
            for hh in range(2):
                yield lambda Ts=Ts, hh=hh: e.bload('buffer_load_dwordx4', HPS[Ts][4 * hh:4 * hh + 4], vL16, sWS, sHs[g3],
                                                   off=1024 * hh, flags=self.o['lfl'], tag=('hld', g3))
        yield ('delay', self.o['d_hl'])
        yield lambda: e.wait(vm=[('hld', g3)])
        yield ('set', f'hp{g3}')
        if self.dbg == 'h' and g3 == 3:
            yield ('until', 'hp1')
            yield ('until', 'hp2')
            yield lambda: None if e.dry else self.dump([HS[d // 8][d % 8] for d in range(72)] + [HPS[d // 8][d % 8] for d in range(72)])

    def tab2_pre(self):
        e = self.e
        a, b = W[68], W[69]
        s0, s1 = sZ0, sO0
        pD2, pDO = PKV[4:8], PKV[8:10]
        pU, pPb = PKS[0:4] + [sU[4]], PKS[4:8]
        yield self.v('v_lshrrev_b32', a, 5, vLane)
        yield self.v('v_lshlrev_b32', a, 9, a)
        for t in range(2):
            for h in range(2):
                yield self.v('v_sub_u32', PKV[2 * t + h], vP1[t][h], a)
        yield self.v('v_bfe_u32', a, vLane, 4, 1)
        yield self.v('v_xor_b32', a, sC, a)
        yield self.v('v_lshlrev_b32', a, 2, a)
        yield self.v('v_and_b32', b, 7, vLane)
        yield self.v('v_xor_b32', a, a, b)
        yield self.v('v_lshrrev_b32', b, 3, vLane)
        yield self.v('v_mul_u32_u24', b, 1152, b)
        yield self.v('v_lshl_add_u32', a, a, 4, b)
        yield self.s('s_and_b32', s1, sW, 1)
        yield self.s('s_mul_i32', s1, s1, 16 * 1152)
        yield self.s('s_mul_i32', s0, sC, 32 * 1152)
        yield self.s('s_add_u32', s0, s0, s1)
        yield self.v('v_add_u32', pD2[0], s0, a)
        yield self.v('v_add_u32', pD2[1], 8 * 1152 - 1024, pD2[0])
        yield self.s('s_mul_i32', s0, sC, -32 * 1152)
        yield self.s('s_add_u32', s0, s0, s1)
        yield self.s('s_add_u32', s0, s0, 32 * 1152)
        yield self.v('v_add_u32', pD2[2], s0, a)
        yield self.v('v_add_u32', pD2[3], 8 * 1152 - 1024, pD2[2])
        yield self.s('s_lshr_b32', s0, sW, 1)
        yield self.s('s_xor_b32', s0, s0, sJ)
        yield self.s('s_mul_i32', s0, s0, 36 * 1152)
        yield self.s('s_lshr_b32', s1, s1, 1)
        yield self.s('s_add_u32', s0, s0, s1)
        yield self.v('v_add_u32', pDO[0], s0, a)
        yield self.v('v_add_u32', pDO[1], 20 * 1152 - 1024, pDO[0])
        yield self.s('s_lshr_b32', s0, sJ, 1)
        yield self.s('s_mul_i32', s0, s0, 576 * 1152)
        yield self.s('s_lshr_b32', s1, sW, 1)
        yield self.s('s_add_u32', pU[0], s1, sRg)
        yield self.s('s_add_u32', pU[1], pU[0], 2)
        for p in range(2):
            yield self.s('s_and_b32', pU[p], pU[p], 3)
            yield self.s('s_mul_i32', pU[p], pU[p], 64 * 1152)
            yield self.s('s_add_u32', pU[p], pU[p], s0)
        yield self.s('s_mul_i32', pU[4], sC, -64 * 1152)
        yield self.s('s_add_u32', pU[4], pU[4], 32 * 1152)
        yield self.s('s_mul_i32', pU[4], pU[4], s1)
        yield self.s('s_add_u32', pU[4], pU[4], s0)
        yield self.s('s_add_u32', pU[4], pU[4], 256 * 1152)
        yield self.s('s_mul_i32', s1, sC, 320 * 1152)
        yield self.s('s_sub_u32', s0, 320 * 1152, s1)
        for p in range(2):
            yield self.s('s_add_u32', pU[2 + p], pU[p], s0)
            yield self.s('s_add_u32', pU[p], pU[p], s1)
        yield self.s('s_mul_i32', s1, sC, 640)
        for u in range(4):
            yield self.s('s_add_u32', s0, sR2, u)
            yield self.s('s_and_b32', s0, s0, 3)
            yield self.s('s_lshl_b32', s0, s0, 7)
            yield self.s('s_add_u32', pPb[u], s0, s1)
        yield self.v('v_add_u32', PKV[10], sM1, vL16)
        yield self.v('v_and_b32', b, 15, vLane)
        yield self.v('v_mul_u32_u24', b, 1152, b)
        yield self.v('v_and_b32', a, 48, vLane)
        yield self.v('v_add_u32', PKV[11], a, b)
        yield self.v('v_lshrrev_b32', a, 3, vLane)
        yield self.v('v_add_u32', a, sR2, a)
        yield self.v('v_and_b32', a, 3, a)
        yield self.v('v_lshl_add_u32', a, a, 7, s1)
        yield self.v('v_mov_b32', b, 512)

        def selw():
            e.ins(f'v_cmp_gt_u32 vcc, 32, {vLane}', w=['vcc'], r=[vLane])
            e.v('v_cndmask_b32', a, b, a)
        yield selw
        yield self.v('v_and_b32', b, 7, vLane)
        yield self.s('s_lshl_b32', s0, sC, 2)
        yield self.v('v_xor_b32', b, s0, b)
        yield self.v('v_lshl_add_u32', PKV[12], b, 4, a)
        yield self.s('s_and_b32', s0, sW, 1)
        yield self.s('s_xor_b32', s0, s0, sJ)
        yield self.s('s_mul_i32', s0, s0, 36)
        yield self.s('s_and_b32', s1, sW, 2)
        yield self.s('s_add_u32', s0, s0, s1)
        yield self.s('s_add_u32', s0, s0, 16)
        yield self.s('s_mul_i32', s0, s0, 1152)
        yield self.s('s_add_u32', s1, s0, 1152 - 1024)
        yield self.v('v_bfe_u32', a, vLane, 2, 2)
        yield self.v('v_lshrrev_b32', b, 5, vLane)
        yield self.v('v_lshl_add_u32', a, b, 2, a)
        yield self.v('v_lshlrev_b32', a, 10, a)
        yield self.v('v_bfe_u32', b, vLane, 4, 1)
        yield self.v('v_lshl_add_u32', a, b, 5, a)
        yield self.v('v_and_b32', b, 3, vLane)
        yield self.v('v_lshl_add_u32', a, b, 3, a)
        yield self.v('v_add_u32', PKV[13], L_T, a)

    def th_tab2(self):
        e = self.e
        s0, s1 = sZ0, sO0
        yield ('until', 'qkv')
        for n in range(12):
            yield self.v('v_mov_b32', V(6 + n), PKV[n])
        yield self.v('v_mov_b32', vWe, PKV[12])
        yield self.v('v_mov_b32', vWm, PKV[13])
        yield ('set', 'tab2v')
        for n in range(4):
            yield self.s('s_mov_b32', sU[n], PKS[n])
            yield self.s('s_mov_b32', sPb[n], PKS[4 + n])
        yield self.s('s_mov_b32', sPb[4], 512)
        yield ('set', 'tab2')
        yield ('until', 'tread')
        yield ('until', f'sync{self.synced + 1}')

        def wox():
            e.s('s_add_u32', 'm0', sM2, L_T)
            e.dma(vWe, sWO, s0, tag=('wox', -1))
            e.dma(vWe, sWO, s1, tag=('wox', -1), off=1024)
            if not e.dry:
                self.ev.add('woxi')
        wox.heavy = True
        self.dma_q.append(wox)
        yield ('until', 'woxi')
        self.vWX = vWm
        yield ('delay', 40)
        yield lambda: e.wait(vm=[('wox', -1)])
        yield ('until', f'sync{self.synced + 1}')
        yield ('set', 'wox')

    def odst(self, n):
        return YB[2][8 * (n & 1):8 * (n & 1) + 8] if n < 8 else YB[8][0:8]

    def paced(self, f):
        f.paced = True
        return f

    def th_out(self):
        e = self.e
        for n in range(9):
            yield ('until', f'tile{n}')
            if 2 <= n < 8:
                yield ('until', f'out{n - 2}')
            acc, D = self.gacc[n], self.odst(n)
            for d in range(8):
                yield from self.rdpack(D[d], acc[2 * d], acc[2 * d + 1], YB[0][12 + 2 * (d & 1)], YB[0][13 + 2 * (d & 1)])
            for h2 in range(2):
                yield self.v('v_permlane32_swap_b32', D[4 * h2], D[4 * h2 + 2])
                yield self.v('v_permlane32_swap_b32', D[4 * h2 + 1], D[4 * h2 + 3])
            yield ('set', f'pk{n}')

    def th_pst(self):
        e = self.e
        for n in range(9):
            yield ('until', f'pk{n}')
            D = self.odst(n)
            for h2 in range(2):
                f = lambda h2=h2, n=n, D=D: e.bstore('buffer_store_dwordx4', D[4 * h2:4 * h2 + 4], vPst, sWS, sPo[n // 4],
                                                     off=1024 * (n % 4) + 512 * h2, flags=self.o['sfl'], tag=('pst', n // 4))
                yield self.paced(f) if n < 6 else f
            yield ('set', f'out{n}')
            if n in (1, 5, 7):
                g = {1: 0, 5: 1, 7: 2}[n]
                yield ('spawn', f'red{g}', self.th_red(g), 0)

    def th_red(self, g):
        e = self.e
        o = self.o
        acc = W[16 * g:16 * g + 16]
        b0 = (0, 64, 96)[g]
        buf = [X[b0 + 4 * n:b0 + 4 * n + 4] for n in range(8)] + [X[128 + 4 * g:132 + 4 * g]]
        sa, sb, sp = sZa[g], sZb[g], sZp[g]
        va, vt, vf = acc[0], acc[1], acc[2]
        fl = g == 0 or (g == 1 and not o['rs1'])
        if fl:
            yield self.s('s_lshl_b32', sa, sI, 4)
            yield self.s('s_add_u32', sa, sa, sC)
            yield self.s('s_lshl_b32', sa, sa, 2)
            yield self.s('s_lshr_b32', sb, sJ, 2)
            yield self.s('s_add_u32', sa, sa, sb)
            yield self.s('s_lshl_b32', sa, sa, 6)
            yield self.v('v_and_b32', va, 7, vLane)
            yield self.v('v_lshl_add_u32', va, va, 9, sa)
        yield self.s('s_lshr_b32', sb, sWg, 1)
        yield self.s('s_mul_i32', sb, sb, 16 * 1152)
        if g < 2:
            ri, ro = vRi, vRo

            def colsel():
                e.s('s_cmp_lt_u32', sW, 2)
                e.s('s_cselect_b32', sp[0], sPb[2 * g], sPb[2 * g + 1])
            yield colsel
            yield self.s('s_add_u32', sb, sb, sp[0])
            yield self.s('s_xor_b32', sp[0], sW, sC)
            yield self.s('s_and_b32', sp[0], sp[0], 1)
        else:
            ri, ro = W[64], W[65]
            yield self.v('v_and_b32', ro, 15, vLane)
            yield self.s('s_lshl_b32', sp[0], sW, 8)
            yield self.v('v_lshl_add_u32', ri, ro, 4, sp[0])
            yield self.v('v_mul_u32_u24', ro, 1152, ro)
            yield self.s('s_lshl_b32', sp[0], sW, 4)
            yield self.s('s_add_u32', sb, sb, sp[0])
            yield self.s('s_add_u32', sb, sb, 512)
            yield self.s('s_mov_b32', sp[0], sC)
        yield self.s('s_lshl_b32', sp[0], sp[0], 6)
        yield self.s('s_add_u32', sb, sb, sp[0])
        yield lambda: e.bload('buffer_load_dwordx4', buf[8], ro, sX, sb, tag=('rl', g, 8))
        yield ('until', f'out{min(4 * g + 3, 8)}')
        if fl:
            yield ('delay', o['d_ack'])
            yield lambda: e.wait(vm=[('pst', g)])
            yield self.flag(5 + g)
        yield ('set', f'pflag{g}')
        yield self.s('s_lshl_b32', sa, sI, 1)
        yield self.s('s_add_u32', sa, sa, sC)
        yield self.s('s_lshl_b32', sa, sa, 3)
        yield self.s('s_lshr_b32', sp[0], sJ, 1)
        yield self.s('s_add_u32', sa, sa, sp[0])
        yield self.s('s_mul_i32', sa, sa, OWN)
        yield self.s('s_add_u32', sa, sa, WS_PART + 4096 * g)
        if fl:
            yield ('delay', o['d_vis'])
            yield from self.poll(va, sWS, 0, 20 + 4 * g, vt, sp)
        else:
            yield ('delay', o['d_r2'] if g == 2 else o['d_r1'])
            yield ('until', 'polled0')
        yield ('set', f'polled{g}')

        def rl():
            for src in range(8):
                yield lambda src=src: e.bload('buffer_load_dwordx4', buf[src], ri, sWS, sa, flags='sc1', tag=('rl', g, src))
                yield self.s('s_add_u32', sa, sa, 9216 if src < 7 else -7 * 9216)
        yield from rl()
        yield lambda: e.wait(vm=[('rl', g, 8)])
        yield lambda: e.mfma(acc, PL, buf[8], 0)
        yield ('delay', o['d_rl'])
        for src in range(8):
            yield lambda src=src: e.wait(vm=[('rl', g, src)])
            yield lambda src=src: e.mfma(acc, PL, buf[src], acc)
        yield ('delay', 2)
        if not fl:
            def redo_r():
                for f in rl():
                    f()
                e.other('s_waitcnt vmcnt(0)')
                e.mfma(acc, PL, buf[8], 0)
                for src in range(8):
                    e.mfma(acc, PL, buf[src], acc)
            yield from self.check(lambda: e.ins(f'v_cmp_u_f32_e64 {sp}, {acc[0]}, {acc[0]}', w=[sp], r=[acc[0]]), sp, redo_r)
        for d in range(4):
            yield self.pack(acc[8 + d], acc[2 * d], acc[2 * d + 1])
        yield lambda: e.bstore('buffer_store_dwordx4', acc[8:12], ro, sOUT, sb, flags=o['ofl'], tag='out')
        yield ('set', f'red{g}')

    def build(self):
        e = self.e
        self.prologue()
        if self.dbg == 'xn':
            self.drain_until('normdone')
            self.dump([X[d] for d in range(144)])
            return self.finish()
        pr = self.o['prio']
        self.spawn('attn', self.th_attn(), pr[0])
        for g3 in range(4):
            self.spawn(f'relu{g3}', self.th_relu(g3), pr[1][g3])
        self.spawn('out', self.th_out(), 1)
        self.spawn('hst', self.th_hst(), pr[4])
        self.spawn('pst', self.th_pst(), 0)

        self.spawn('rdy', self.th_ready(), -1)

        def late_clr():
            yield ('until', self.o['clr0'])
            yield from self.clr_ops()
        self.spawn('clrs', late_clr(), -1)
        self.spawn('clr', self.th_clr(), -1)
        if self.o['pf'] & 2:
            self.spawn('pf', self.th_pf(), -1)
        else:
            self.ev.update(('pf', 'pfa'))
        if self.o['pf'] & 1:
            self.spawn('pf1', self.th_pf1(), -1)
        else:
            self.ev.add('pf1')
        self.spawn('tab2', self.th_tab2(), pr[2])
        self.ta = 0.0
        if self.o['pro_n']:
            self.drain_until(self.o['pro_n'])
            self.stepno = 0
            self.ta = self.st = 0.0
        self.stream()
        if not self.stop:
            self.stamp('end', real=True)
            self.stamp_out()
        if self.o['verbose']:
            print('events:', sorted(self.evstep.items(), key=lambda kv: kv[1])[36:], file=sys.stderr)
            print('steps', self.stepno, 'insts', e.ninst, 'nops', e.nops, file=sys.stderr)
        return self.finish()

    def finish(self):
        e = self.e
        e.label('L_end')
        e.other('s_endpgm')
        for f in self.slow:
            e.fence_all()
            f()
        hdr = open('cdna_kernels/' + NAME + '.s.ref').read().split('; Override')[0].rstrip('\n')
        hdr = '\n'.join(l[2:] if l.startswith('; ') else l for l in hdr.split('\n'))
        return kernel_file([dict(name=NAME + '_kernel', body=e.text(), grid=(256, 1, 1), block=(256, 1, 1),
                                 lds=LDS_BYTES, vgpr=512, sgpr=102, accum=256)], header_comment=hdr)


if __name__ == '__main__':
    import argparse
    ap = argparse.ArgumentParser()
    ap.add_argument('--dbg', default=None)
    ap.add_argument('--out', default='cdna_kernels/' + NAME + '.s')
    ap.add_argument('--opts', default='{}')
    a = ap.parse_args()
    g = Gen(dbg=a.dbg, opts=eval(a.opts))
    txt = g.build()
    open(a.out, 'w').write(txt)
    print('written', a.out, 'lines', txt.count('\n'), 'nops', g.e.nops, 'stamps', g.stamp_names, g.slow_names)
```

```python
import sys, struct
from collections import deque
from emit import *


def fh(f):
    return '0x%08x' % struct.unpack('<I', struct.pack('<f', f))[0]


L_WP, L_KVS, L_ZERO = 0, 1600, 4800
RB = 6400
RING = 122880
REND = RB + RING
L_T = REND
LDS_BYTES = L_T + 30720 + 256
assert LDS_BYTES <= 163840
HIW = 65536 - 1024

WS_FL = 0
WS_KVP = 1 << 20
WS_KVF = 3 << 20
WS_HX = 4 << 20
HXW = 21504
WS_PART = 32 << 20
OWN = 73728
WS_DUMP = 64 << 20
LOG2E = 1.4426950408889634

sX, sWQ, sW1, sW2, sWO, sOUT, sWS, sDBG, sWP = (S(24 + 4 * n, 4) for n in range(9))
sI, sJ, sW, sWg = S(60), S(61), S(62), S(63)
sQb = [S(64 + n) for n in range(9)]
sPb = sQb[0:5]
sU = sQb[5:9] + [S(99)]
s1b = [S(73 + n) for n in range(9)]
sM1, sM2, sM4 = S(82), S(83), S(84)
sMask, sLog, sRg, sR2, sC = S(85), S(86), S(87), S(88), S(89)
sPo = [S(90 + n) for n in range(3)]
sHo, sHi = S(93), S(94)
sFo = S(95)
sT0, sT1, sT2, sT3 = S(96), S(97), S(98), S(99)
sD = sT0
sOne = S(100)
sA0, sA1 = S(4), S(5)
sApair = S(6, 2)
sR0 = S(8)
sHs = [S(9), S(19), S(3), S(9)]
sHp = [S(10, 2), S(16, 2), S(22, 2), S(10, 2)]
sO0, sZ0 = S(12), S(13)
sYpair = S(14, 2)
sCnt = S(18)
sPf = S(17)
sStamp = S(20, 2)
sFp = S(101)
sZp = [S(74, 2), S(76, 2), S(78, 2)]
sZa = [S(73), S(80), S(81)]
sZb = [S(12), S(13), S(8)]

vTid, vLane = V(0), V(1)
vP1 = [V(2, 2), V(4, 2)]
vAQ = [V(6 + 2 * n, 2) for n in range(4)]
vDQ = [V(14 + n) for n in range(4)]
vP2 = [V(6, 2), V(8, 2)]
vD2 = [V(10 + n) for n in range(4)]
vDO = [V(14), V(15)]
vRi, vRo = V(16), V(17)
vD1 = [V(18 + n) for n in range(4)]
vWm, vWe, vKm, vKe, vTw, vTa, vTb, vPst, vL16, vRinv = (V(22 + n) for n in range(10))
vStm = V(0)
PL, PH = V(32, 4), V(36, 4)
Y = V(40, 144)
YB = [Y[16 * n:16 * n + 16] for n in range(9)]
W = V(184, 72)
vOne, vW4 = W[70], W[71]
PKV = [W[52 + n] for n in range(14)]
PKS = [S(0), S(1), S(3), S(9), S(19), S(10), S(11), S(16)]
X = A(0, 144)
AF = A(144, 32)
AS = A(176, 32)
HPa = A(208, 48)
HPS = [HPa[8 * n:8 * n + 8] for n in range(6)] + [AS[8 * n:8 * n + 8] for n in range(3)]
FACC = [[YB[4], YB[5]], [YB[6], YB[7], YB[8]], [YB[5], YB[0]], [YB[1], YB[2]]]
HS = [YB[4][0:8], YB[4][8:16], YB[6][0:8], YB[6][8:16], YB[7][0:8], YB[5][0:8], YB[5][8:16], YB[1][0:8], YB[1][8:16]]
HG = [(0, 2), (2, 5), (5, 7), (7, 9)]
QA = [YB[0], YB[1], YB[2], YB[3]]
GB = [YB[3][4 * n:4 * n + 4] for n in range(4)] + [YB[8][4 * n:4 * n + 4] for n in range(4)] + [YB[7][8:12], YB[7][12:16]]

B8 = ('v_add_f32_dpp', 'ds_', 'buffer_', 'global_', 'v_mfma', 'v_accvgpr', 'v_pk_', 'v_cvt_pk', 'v_fma_', 'v_max3', 'v_min3', 'v_lshl_add', 'v_add_lshl', 'v_mad', 'v_add3', 'v_bfe', 'v_mul_lo', 'v_writelane', 'v_readlane', 's_mem', 's_load')
VALU = ('valu', 'trans', 'perm', 'rdlane')
VOP3 = ('v_cvt_pk', 'v_fma_', 'v_max3', 'v_min3', 'v_accvgpr', 'v_pk_', 'v_lshl_add', 'v_add3', 'v_bfe', 'v_mul_lo', 'v_writelane')


class Th:
    def __init__(self, name, gen, prio):
        self.name, self.g, self.prio = name, gen, prio
        self.head, self.wake, self.done = None, 0, False

    def peek(self, sc, force=False):
        while True:
            if self.done:
                return None
            if sc.stepno < self.wake and not force:
                return None
            if self.head is None:
                try:
                    self.head = next(self.g)
                except StopIteration:
                    self.done = True
                    return None
            h = self.head
            if isinstance(h, tuple):
                if h[0] == 'delay':
                    self.wake = sc.stepno + h[1]
                    self.head = None
                    if force:
                        return None
                elif h[0] == 'until':
                    if h[1] not in sc.ev:
                        return None
                    self.head = None
                elif h[0] == 'set':
                    sc.ev.add(h[1])
                    sc.evstep[h[1]] = sc.stepno
                    if h[1] in sc.o['sev']:
                        sc.stamp(f'{h[1]}@{sc.stepno}')
                    self.head = None
                elif h[0] == 'spawn':
                    sc.spawn(*h[1:])
                    self.head = None
                else:
                    raise ValueError(h)
                continue
            return h


class Rec:
    def __init__(self, e):
        self.__dict__.update(e=e, q=[], glue=False, dry=False)

    def mark(self, name):
        self.q.append(name)

    def __getattr__(self, name):
        fn = getattr(self.e, name)

        def rec(*a, **k):
            f = lambda: fn(*a, **k)
            if self.glue or (name == 's' and a[0].startswith('s_cselect')):
                prev = self.q.pop()
                self.q.append(lambda: (prev(), f()))
            else:
                self.q.append(f)
        return rec


class Gen:
    def __init__(self, dbg=None, opts=None):
        self.e = Emitter()
        self.dbg = dbg
        self.o = dict(LA=7, bytes=52, rot=True, touch=1, stamps=False, map='a', nD=3, bq=7, bf=7, bg=7,
                      ilv=True, g1=(0, 1, 2), st_c=8, d_clr=12, clr3='hp1', d_clr3=10, clr0='norm6', pf=3, pf1=('norm4', 14, range(8)), pf2=('normdone', 12, range(8)), pst=False, tlb=2, pro_0=12, pro_t=200, pfo=True, wfl='', xfl='', pfl='', pro_k=3, pro_tk=3, pro_mk=4, pro_x=2, pro_i=4, pro_j=3, pro_lag=4, pro_w=8, pro_wn=6, pro_v=2, rgm=0, pro_n='norm1', g2='00 01 02 03 10 11 12 13 20 21 22 23 L0 L1 L2 L3 U4', rs1=False, d_r1=40, rdy0='norm12', d_kvr=50, d_gl=40, d_kv2=50, d_hl=60, d_rl=40, d_kv=50, d_o=50, d_r2=50, sfl='sc1', prio=(0.13, (0.15, 0.15, 0.15, 0.15), 0.1, 3, 0.12), urg=1, lfl='', ta_q=3.2, ta_d=2.1, ta_s=0.5, ta_slack=1.0, d_ack=30, d_poll=28, d_load=32, d_vis=45, ofl='', verbose=False,
                      sev=('qkv', 'acc3', 'tile0', 'tile8', 'pflag2', 'polled2'))
        if opts:
            self.o.update(opts)
        self.ev, self.evstep = set(), {}
        self.threads = []
        self.stepno = 0
        self.dma_q = deque()
        self.slow = []
        self.nstamp = 0
        self.nslow = 0
        self.slow_names = []
        self.stamp_names = []
        self.stop = False
        self.lastdma, self.look = {}, []
        self.build_stream()

    def build_stream(self):
        G, ST, IT = [], [], []
        nD = self.o['nD']

        def grp(size, mreg, dmas):
            G.append(dict(size=size, mreg=mreg, dmas=dmas, addr=None))
            return len(G) - 1

        pend = []
        for g3 in range(4):
            accs = FACC[g3]
            for kp in range(9):
                if g3 == 0:
                    gq = grp(16384, sM4, [(vDQ[kk], sWQ, sQb[kp], 1024 * kk) for kk in range(4)])
                    G[gq]['ta'] = self.o['ta_q']
                if g3 == 1:
                    g = grp(16384, sM4, [(vD1[c], sW1, s1b[kp], 1024 * c) for c in range(4)])
                    ST.append([g])
                else:
                    g = grp(8192, sM2, [(vD1[c], sW1, s1b[kp], 1024 * c) for c in range(2)])
                    if g3 == 0:
                        ST.append([gq, g])
                    else:
                        pend.append(g)
                        if len(pend) == 2:
                            ST.append(pend)
                            pend = []
                if kp == 0 and g3 > 0:
                    G[g]['pre'] = f'd1_{g3}'
                for kk in range(4):
                    ks = 4 * kp + kk
                    if g3 == 0:
                        for tl in (1, 3, 2, 0):
                            IT.append(dict(g=gq, off=1024 * kk, pat=vAQ[tl], us=256, b=X[4 * ks:4 * ks + 4], acc=QA[tl],
                                           first=ks == 0, need=[f'norm{ks}'] if tl == 1 else [], ph='q'))
                        if ks == 35:
                            IT[-1]['done'] = ['qkv']
                    for t in range(len(accs)):
                        off = ((t >> 1) * 2 + (kk >> 1)) * 4096 + (kk & 1) * 2048 if g3 == 1 else kk * 2048
                        it = dict(g=g, off=off, pat=vP1[t & 1], us=512, b=X[4 * ks:4 * ks + 4],
                                  acc=accs[t], first=ks == 0, need=[], ph='q' if g3 == 0 else 'f')
                        if ks == 0 and t == 0:
                            it['need'] = {0: [], 1: ['clr', 'clr2', 'pf1', 'pfa'],
                                          2: ['hf0', 'qaread'], 3: ['qaread']}[g3]
                        IT.append(it)
            IT[-1].setdefault('done', []).append(f'acc{g3}')
        assert not pend
        self.gacc = [X[16 * n:16 * n + 16] for n in range(8)] + [YB[8]]
        self.OF, self.OP = YB[0][0:12], YB[7][8:16]
        started = set()

        def tiles(U):
            return [2 * U, 2 * U + 1] if U < 4 else [8]

        def kitems(g, U, blocks, needs):
            for (off, b, pats, us, nd) in blocks:
                for t, n in enumerate(tiles(U)):
                    it = dict(g=g, off=off, pat=pats[t], us=us, b=b, acc=self.gacc[n], first=n not in started,
                              need=list(nd) if t == 0 else [], ph='g')
                    if it['first']:
                        started.add(n)
                        if n == 8:
                            it['need'].append('xlow')
                    IT.append(it)

        hgrp = {0: 0, 1: 1, 4: 1, 2: 2, 3: 3}
        hslot = {0: 0, 1: 2, 4: 4, 2: 5, 3: 7}

        def w2grp(U, gi):
            nt = 2 if gi < 4 else 1
            g = grp(8192 * nt, sM4 if nt == 2 else sM2, [(vD2[c], sW2, sD, 1024 * (c & 1)) for c in range(2 * nt)])
            G[g]['m0b'] = 2
            G[g]['sadd'] = (sPb[U], sU[gi])
            bl = []
            for w in range(4):
                for t in range(nt):
                    own = gi < 2 or (gi == 4 and w < 2)
                    hu = 4 if gi == 4 else 2 * (gi & 1) + (w >> 1)
                    sl = hslot[hu] + (t if (own or gi == 4) else t ^ 1)
                    src = HS[sl] if own else HPS[sl]
                    o = 4 * (w & 1)
                    nd = [('hf' if own else 'hp') + str(hgrp[hu])] if (w & 1) == 0 and t == 0 else []
                    bl.append((w * 2048 * nt + t * 2048, src[o:o + 4], vP2, 1024, nd))
            kitems(g, U, bl, None)
            return g

        def wogrp(U):
            g = grp(8192, sM2, [(vDO[c], sWO, sPb[U], 1024 * c) for c in range(2)])
            bl = []
            for w in range(4):
                src = self.OF if w < 2 else self.OP
                bl.append((w * 2048, src[4 * (w & 1):4 * (w & 1) + 4], vP1, 512, ['of'] if w == 0 else ['op'] if w == 2 else []))
            kitems(g, U, bl, None)
            for n in tiles(U):
                IT.append(dict(g=None, wox=n, b=self.OF[8:12], acc=self.gacc[n], first=False, need=['wox'], ph='g', done=[f'tile{n}']))
            return g

        for tok in self.o['g2'].split():
            U = int(tok[1])
            if tok[0] in 'EU':
                for gi in (0, 2, 1):
                    ST.append([w2grp(U, gi)])
            if tok[0] in 'LU':
                ST.append([w2grp(U, 3)])
                ST.append([w2grp(U, 4), wogrp(U)])
            if tok[0] in '0123':
                ST.append([w2grp(U, int(tok[0]))])
            if tok[0] == 'W':
                ST.append([w2grp(U, 4), wogrp(U)])
        self.G, self.ST, self.IT = G, ST, IT
        for s, gs in enumerate(ST):
            for g in gs:
                G[g]['stage'] = s
        self.synced = -1
        self.next_stage = 0
        self.rhead = RB
        self.live = deque()
        self.rlimit = RB + 65536
        self.stage_gate = {}
        first_g2 = next(s for s, gs in enumerate(ST) if G[gs[0]]['dmas'][0][1] is sW2)
        self.stage_gate[first_g2] = 'tab2'

    def try_alloc_stage(self):
        s = self.next_stage
        if s >= len(self.ST):
            return False
        if s in self.stage_gate and self.stage_gate[s] not in self.ev:
            return False
        head = self.rhead
        ranges = []
        for g in self.ST[s]:
            sz = self.G[g]['size']
            st = head if head + sz <= self.rlimit else RB
            for (_, a, b) in list(self.live) + ranges:
                if st < b and a < st + sz:
                    return False
            ranges.append((s, st, st + sz))
            head = st + sz
        for g, r in zip(self.ST[s], ranges):
            self.G[g]['addr'] = r[1]
            self.live.append(r)
            self.queue_group(g)
        self.rhead = head
        self.next_stage += 1
        return True

    def queue_group(self, g):
        e = self.e
        gr = self.G[g]
        if gr.get('pre'):
            self.dma_q.extend(self.d1_update(int(gr['pre'][-1])))
        self.dma_q.append(lambda: e.s('s_add_u32', 'm0', gr['mreg'], gr['addr']))
        if gr.get('sadd'):
            self.dma_q.append(lambda: e.s('s_add_u32', sD, *gr['sadd']))
        for n_, (voff, srd, soff, imm) in enumerate(gr['dmas']):
            if n_ and n_ == gr.get('m0b'):
                self.dma_q.append(lambda: e.s('s_add_u32', 'm0', gr['mreg'], gr['addr'] + 2048))
            f = lambda voff=voff, srd=srd, soff=soff, imm=imm: e.dma(voff, srd, soff, tag=('st', gr['stage']), off=imm, flags=self.o['wfl'])
            f.ta = gr.get('ta', self.o['ta_d'])
            f.stage = gr['stage']
            self.dma_q.append(f)

    def d1_update(self, g3):
        e = self.e
        n = 4 if g3 == 1 else 2
        pre = []
        if g3 == 3:
            def d3():
                e.s('s_cmp_eq_u32', sRg, 1)
                e.s('s_cselect_b32', sT1, -3, 1)
                e.s('s_lshl_b32', sT1, sT1, 7)
            pre = [d3]
        return pre + [lambda c=c: e.v('v_add_u32', vD1[c], sT2 if g3 == 2 else sT1, vD1[c]) for c in range(n)]

    def fill(self):
        while self.try_alloc_stage():
            pass

    def flush_dma(self):
        while self.dma_q:
            self.dma_q.popleft()()

    def sync(self, s):
        e = self.e
        assert s == self.synced + 1
        if self.next_stage <= s:
            g = self.stage_gate.get(self.next_stage)
            if g:
                self.drain_until(g)
            self.fill()
        assert self.next_stage > s, ('stage not allocated', s)
        if not any(t == ('st', s) for t in e.vmq) or self.dma_q:
            need = sum(len(self.G[g]['dmas']) for g in self.ST[s])
            while self.dma_q and self.issued.get(s, 0) < need:
                self.pop_dma()
        self.look.append((s, self.stepno, self.stepno - self.lastdma[s], len(e.vmq)))
        e.wait(vm=[('st', s)])
        e.barrier()
        self.synced = s
        self.ev.add(f'sync{s}')
        while self.live and self.live[0][0] <= s - 2:
            self.live.popleft()
        self.fill()

    issued = None

    def pop_dma(self):
        e = self.e
        n0 = len(e.vmq)
        f = self.dma_q.popleft()
        f()
        if len(e.vmq) > n0:
            s = e.vmq[-1][1]
            self.issued[s] = self.issued.get(s, 0) + 1
            self.lastdma[s] = self.stepno
            self.ta_use(getattr(f, 'ta', self.o['ta_d']) * (len(e.vmq) - n0))

    ta = 0.0
    st = 0.0

    def ta_use(self, c):
        self.ta = max(self.ta, self.stepno) + c

    def ta_ok(self):
        return self.ta <= self.stepno + self.o['ta_slack']

    def ta_cost(self, pr):
        c = 0
        for cls, st, txt in pr:
            if cls in ('vmem', 'dma'):
                c += self.o['ta_d'] if 'x4' in txt else self.o['ta_d'] / 2 if 'x2' in txt else self.o['ta_s']
        return c

    def spawn(self, name, gen, prio):
        self.threads.append(Th(name, gen, prio))
        self.threads.sort(key=lambda t: t.prio)

    @staticmethod
    def size(txt):
        op = txt.split()[0]
        if op.startswith(B8) or '_e64' in op:
            return 8
        for a in txt.replace(',', ' ').split()[1:]:
            if a.startswith('0x') or (a.lstrip('-').isdigit() and not -16 <= int(a) <= 64):
                return 8 if not op.startswith(('s_waitcnt', 's_nop', 's_sleep')) else 4
        return 4

    @staticmethod
    def cost(pr):
        return sum(2 if cls in ('trans', 'perm') else 1 for cls, st, txt in pr)

    def nbytes(self, pr):
        return sum(self.size(txt) for cls, st, txt in pr)

    def pick(self, kinds, allow_stall=False, force=False, fit=None):
        ths = list(self.threads)
        if kinds == ('vm',):
            ths.sort(key=lambda t: 0 if t.name == 'attn' else 1)
        for th in ths:
            while True:
                h = th.peek(self, force)
                if h is None:
                    break
                pr = self.e.probe(h)
                if not pr:
                    h()
                    th.head = None
                    continue
                cls = pr[0][0]
                k = 'mfma' if cls == 'mfma' else 'vm' if any(p[0] in ('vmem', 'dma') and 'dwordx' in p[2] for p in pr) else 'mem' if any(p[0] in ('ds', 'vmem') for p in pr) else \
                    'valu' if cls in VALU else 'sal'
                if getattr(h, 'paced', False) and self.st > self.stepno:
                    break
                if k in kinds and (allow_stall or pr[0][1] <= 0) and (fit is None or fit(pr)):
                    return th, h, pr
                break
        return None

    def run(self, sel):
        th, h, pr = sel
        if getattr(h, 'data', False) and self.o.get('skip'):
            th.head = None
            return self.cost(pr)
        h()
        th.head = None
        c = self.ta_cost(pr)
        if c:
            self.ta_use(c)
        ns = sum(1 for p in pr if p[2].startswith('buffer_store_dwordx4'))
        if ns:
            self.st = max(self.st, self.stepno) + ns * self.o['st_c']
        return self.cost(pr)

    def dma_head(self):
        for n, f in enumerate(self.dma_q):
            if hasattr(f, 'stage'):
                return f.stage <= self.synced + self.o.get('urg', 2), n
        return False, len(self.dma_q)

    def windows(self, n0, budget):
        e = self.e
        bmax = self.o['bytes'] + 8 * (budget - 7)

        def state():
            ls = [l.strip() for l in e.lines[n0:] if not l.endswith(':') and not l.strip().startswith(';')]
            return (sum(2 if l.startswith(('v_exp', 'v_rcp', 'v_rsq', 'v_sqrt', 'v_permlane')) else 1 for l in ls),
                    sum(self.size(l) for l in ls))

        def fit(pr):
            u, b = state()
            c = self.cost(pr)
            return (u + c <= (budget if pr[-1][0] in VALU else budget - 1) and b + self.nbytes(pr) <= bmax) or (u <= 3 and c > 2)

        k = 0
        while k < 2:
            if self.dma_q and not hasattr(self.dma_q[0], 'stage') and not hasattr(self.dma_q[0], 'heavy'):
                self.pop_dma()
                k += 1
                continue
            if not self.ta_ok():
                break
            urgent = self.dma_q and self.dma_head()[0]
            sel = None if urgent else self.pick(('vm',), fit=fit)
            if sel:
                self.run(sel)
            elif self.dma_q:
                if e.probe(self.dma_q[0])[0][1] > 0:
                    sel = self.pick(('sal', 'mem'), fit=fit)
                    if sel:
                        self.run(sel)
                    else:
                        break
                self.pop_dma()
            else:
                break
            k += 1
        k = 0
        while k < 2:
            sel = self.pick(('mem',), fit=fit)
            if not sel:
                break
            self.run(sel)
            k += 1
        while True:
            sel = self.pick(('valu', 'sal'), fit=fit)
            if not sel:
                break
            self.run(sel)

    def drain_until(self, key):
        start = self.e.ninst
        acc = 0.0
        while (key not in self.ev) if key else any(not t.done for t in self.threads):
            if self.stop:
                return
            while acc >= 8:
                acc -= 8
                self.stepno += 1
            if self.dma_q and (self.ta_ok() or not hasattr(self.dma_q[0], 'stage')):
                self.pop_dma()
                acc += 1
                continue
            kinds = ('mfma', 'vm', 'mem', 'valu', 'sal') if self.ta_ok() else ('mfma', 'mem', 'valu', 'sal')
            sel = self.pick(kinds) or self.pick(kinds, allow_stall=True)
            if sel:
                acc += max(sel[2][0][1], 0)
                acc += self.run(sel)
                continue
            if not self.ta_ok() and (self.dma_q or self.pick(('vm',), allow_stall=True)):
                self.stepno += 1
                continue
            if key and key in self.ev:
                break
            if self.st > self.stepno and any(getattr(t.head, 'paced', False) for t in self.threads if not t.done):
                self.stepno += 1
                continue
            sleepers = [t for t in self.threads if not t.done and t.wake > self.stepno]
            if sleepers:
                self.stepno = min(t.wake for t in sleepers)
                continue
            if all(t.done for t in self.threads) and not key:
                break
            raise RuntimeError(f'deadlock waiting for {key}: ' + str([(t.name, t.head) for t in self.threads if not t.done]))
        if self.o['verbose'] and self.e.ninst - start > 8:
            print(f'drain for {key} at step {self.stepno}: {self.e.ninst - start} instrs', file=sys.stderr)

    def reads(self, idx):
        e = self.e
        it = self.IT[idx]
        fr = AF[4 * (idx % 8):4 * (idx % 8) + 4]
        if it['g'] is None:
            if 'wox' not in self.ev:
                self.drain_until('wox')
            e.ds('ds_read_b64_tr_b16', fr[0:2], self.vWX, off=64 * it['wox'], tag=('fr', idx))
            return 1
        gr = self.G[it['g']]
        if gr['stage'] > self.synced:
            self.sync(gr['stage'])
        a = gr['addr'] + it['off']
        pat = it['pat'][0]
        if a + it['us'] > 65535:
            pat, a = it['pat'][1], a - HIW
        e.ds('ds_read_b64_tr_b16', fr[0:2], pat, off=a, tag=('fr', idx))
        e.ds('ds_read_b64_tr_b16', fr[2:4], pat, off=a + it['us'], tag=('fr', idx))
        return 2

    def stream(self):
        e = self.e
        LA = self.o['LA']
        IT = self.IT
        n = len(IT)
        for idx in range(LA):
            self.reads(idx)
        m = 0
        while m < n and not self.stop:
            it = IT[m]
            ev_ = self.o.get('every')
            if ev_ and ev_[0] <= self.stepno < ev_[1] and self.stepno >= self.next_ev:
                self.stamp(str(self.stepno))
                self.next_ev = self.stepno + ev_[2]
            budget = self.o[{'q': 'bq', 'f': 'bf', 'g': 'bg'}[it['ph']]]
            sel = self.pick(('mfma',))
            if sel:
                self.run(sel)
                self.windows(len(e.lines) - 1, budget)
                self.stepno += 1
                continue
            for k in it['need']:
                if k not in self.ev:
                    self.drain_until(k)
            if self.stop:
                break
            e.wait(lg=[('fr', m)])
            fr = AF[4 * (m % 8):4 * (m % 8) + 4]
            e.mfma(it['acc'], fr, it['b'], 0 if it['first'] else it['acc'])
            n0 = len(e.lines) - 1
            for k in it.get('done', ()):
                self.ev.add(k)
                self.evstep[k] = self.stepno
                if k in self.o['sev']:
                    self.stamp(f'{k}@{self.stepno}')
            if m + LA < n:
                self.reads(m + LA)
            if m % 2 == 1:
                e.wait(lg=[('fr', m + 1), ('fr', m + 2)])
            self.windows(n0, budget)
            self.stepno += 1
            m += 1
        self.drain_until(None)

    def dump(self, regs):
        e = self.e
        e.wait(vm='all', lg='all')
        e.fence_all()
        t0, t1 = V(0), V(1)
        e.v('v_lshlrev_b32', t0, 2, vTid)
        e.s('s_mul_i32', sT0, sWg, len(regs) * 1024)
        e.s('s_add_u32', sT0, sT0, WS_DUMP)
        for r in regs:
            if r.k == 'a':
                e.v('v_accvgpr_read_b32', t1, r)
                r = t1
            e.bstore('buffer_store_dword', r, t0, sWS, sT0)
            e.s('s_add_u32', sT0, sT0, 1024)
        e.wait(vm='all')
        e.other('s_endpgm')
        self.stop = True

    def stamp(self, name, real=False):
        if not self.o['stamps'] or self.e.dry or self.nstamp >= 47 and not real:
            return
        e = self.e
        if real or self.e.ninst - self.last_stamp < 24:
            e.wait(lg='all')
            e.other('s_waitcnt lgkmcnt(0)')
        self.last_stamp = self.e.ninst
        vStm = self.vs
        if self.nstamp > 1:
            e.ins(f'v_writelane_b32 {vStm}, {sStamp[0]}, {self.nstamp - 1}', w=[vStm], r=[vStm])
        e.other(f's_memtime {sStamp}', w=[sStamp])
        if real:
            e.other('s_waitcnt lgkmcnt(0)')
            e.ins(f'v_writelane_b32 {vStm}, {sStamp[0]}, {self.nstamp}', w=[vStm], r=[vStm])
            e.other(f's_memrealtime {sStamp}', w=[sStamp])
            e.other('s_waitcnt lgkmcnt(0)')
            e.ins(f'v_writelane_b32 {vStm}, {sStamp[0]}, 61', w=[vStm], r=[vStm])
        self.stamp_names.append(name)
        self.nstamp += 1

    last_stamp = -100
    vs = YB[5][0]
    next_ev = 0

    def stamp_out(self):
        if not self.o['stamps']:
            return
        e = self.e
        e.v('v_lshlrev_b32', W[0], 2, vLane)
        e.s('s_lshl_b32', sT0, S(2), 2)
        e.s('s_add_u32', sT0, sT0, sW)
        e.s('s_lshl_b32', sT0, sT0, 8)
        e.s('s_add_u32', sT0, sT0, WS_DUMP)
        e.bstore('buffer_store_dword', vStm, W[0], sWS, sT0)

    def srd(self, d, ptr, nbytes):
        e = self.e
        e.s('s_mov_b32', d[0], ptr[0])
        e.s('s_and_b32', d[1], ptr[1], '0xffff')
        e.s('s_mov_b32', d[2], nbytes)
        e.s('s_mov_b32', d[3], '0x20000')

    def mod(self, r, m, subs):
        e = self.e
        for sub in subs:
            e.s('s_cmp_ge_u32', r, sub)
            e.s('s_cselect_b32', sT3, sub, 0)
            e.s('s_sub_u32', r, r, sT3)

    def inc9(self, r, m=9):
        e = self.e
        e.s('s_add_u32', r, r, 1)
        e.s('s_cmp_eq_u32', r, m)
        e.s('s_cselect_b32', r, 0, r)

    def prologue(self):
        e = self.e
        o = self.o
        t = [W[n] for n in range(72)]
        junk = t[67]
        e.s('s_cmp_ge_u32', S(2), 256)
        e.other('s_cbranch_scc1 L_end')
        e.other('s_load_dwordx16 s[4:19], s[0:1], 0')
        e.other('s_load_dwordx4 s[20:23], s[0:1], 64')
        if o['stamps']:
            e.other(f's_memtime {S(64, 2)}', w=[S(64, 2)])
            e.other(f's_memrealtime {S(66, 2)}', w=[S(66, 2)])
            self.stamp_names.append('start')
            self.nstamp = 1
        if o['touch']:
            pc = S(96, 2)
            e.other(f's_getpc_b64 {pc}', w=[pc])
            e.label('L_pc')
            if o['touch'] == 2:
                e.v('v_lshlrev_b32', t[0], 7, vTid)
                for rnd in range(2):
                    e.ins(f'v_min_u32 {t[1]}, L_end-L_pc, {t[0]}', w=[t[1]], r=[t[0]])
                    e.gload('global_load_dword', junk, t[1], pc, tag='pf')
                    if rnd == 0:
                        e.v('v_add_u32', t[0], 32768, t[0])
            else:
                e.s('s_bfe_u32', sT2, S(2), '0x30003')
                e.v('v_lshrrev_b32', t[0], 2, vTid)
                e.v('v_lshl_add_u32', t[0], sT2, 6, t[0])
                e.v('v_lshlrev_b32', t[0], 7, t[0])
                e.ins(f'v_min_u32 {t[1]}, L_end-L_pc, {t[0]}', w=[t[1]], r=[t[0]])
                e.gload('global_load_dword', junk, t[1], pc, tag='pf')
        e.v('v_and_b32', vLane, 63, vTid)
        e.v('v_lshrrev_b32', t[0], 6, vTid)
        e.v('v_readfirstlane_b32', sW, t[0])
        lni = {'a': 3, 'b': 2, 'c': 1}[o['map']]
        xcd, slot = sRg, sR2
        e.s('s_and_b32', xcd, S(2), 7)
        e.s('s_lshr_b32', slot, S(2), 3)
        e.s('s_and_b32', sT0, xcd, (16 >> lni) - 1)
        e.s('s_lshl_b32', sT0, sT0, lni)
        e.s('s_and_b32', sT1, slot, (1 << lni) - 1)
        e.s('s_add_u32', sI, sT0, sT1)
        e.s('s_lshr_b32', sT0, xcd, 4 - lni)
        e.s('s_lshl_b32', sT0, sT0, 5 - lni)
        e.s('s_lshr_b32', sT2, slot, lni)
        e.s('s_add_u32', sJ, sT0, sT2)
        e.s('s_lshl_b32', sT1, sT1, 3 - lni)
        if lni != 3:
            e.s('s_lshr_b32', sT0, sI, lni)
            e.s('s_add_u32', sT1, sT1, sT0)
        else:
            e.s('s_lshl_b32', sT2, sT2, 1)
        rho, ph = sLog, sC
        e.s('s_add_u32', rho, sT1, sT2)
        e.s('s_mov_b32', ph, sT1)
        self.mod(rho, 9, (18, 9, 9) if lni != 3 else (9,))
        if lni != 3:
            self.mod(ph, 9, (9,))
        if not o['rot']:
            e.s('s_mov_b32', rho, 0)
            e.s('s_mov_b32', ph, 0)
        vDX = [t[40 + n] for n in range(4)]
        r8, p8 = t[5], t[6]
        e.v('v_lshrrev_b32', r8, 3, vLane)
        e.v('v_and_b32', p8, 7, vLane)
        e.v('v_xor_b32', t[7], p8, r8)
        e.v('v_mul_u32_u24', vDX[0], 1152, r8)
        e.v('v_lshl_add_u32', vDX[0], t[7], 4, vDX[0])
        for c in range(1, 4):
            e.v('v_add_u32', vDX[c], c * (8 * 1152 - 1024), vDX[0])
        xcur, xbeg, xend, xs2 = sHo, sHi, sPo[0], sPo[1]
        e.s('s_lshl_b32', xbeg, sI, 2)
        e.s('s_add_u32', xbeg, xbeg, sW)
        e.s('s_mul_i32', xbeg, xbeg, 32 * 1152)
        e.s('s_add_u32', xend, xbeg, 1152)
        e.s('s_lshl_b32', xcur, rho, 7)
        e.s('s_add_u32', xcur, xcur, xbeg)
        e.s('s_lshl_b32', sM4, sW, 12)
        e.s('s_mul_i32', xs2, sW, 20480)

        T = Rec(e)
        self.e = T
        self.tables(t, r8, p8, rho, ph, xs2)
        self.e = e
        fq = T.q

        def fill(n=1 << 30, upto=None):
            while fq and n > 0:
                f = fq[0]
                if isinstance(f, str):
                    if f == 'xend' and not xdone[0]:
                        return
                    fq.pop(0)
                    if f == upto:
                        return
                    continue
                fq.pop(0)()
                n -= 1

        def need(mark):
            if mark in fq:
                fill(upto=mark)
        xdone = [False]
        fill(o['pro_0'], upto='k')
        e.other('s_waitcnt lgkmcnt(0)')
        self.srd(sX, S(4, 2), 2359296)
        xr, xr2 = [t[44 + n] for n in range(4)], [t[48 + n] for n in range(4)]
        G, SM, A16 = YB[6], YB[7][0:4], YB[7][4:8]
        mq = deque()

        def consume(kp):
            need('xr')
            e.wait(vm=[('x', kp)])
            if o['pst'] and kp in (0, 2, 4, 6, 8):
                self.stamp(f'x{kp}')
            for kk in range(4):
                ks = 4 * kp + kk
                e.ds('ds_read_b128', X[4 * ks:4 * ks + 4], (xr if kp < 4 else xr2)[kk], off=kp * 16384 if kp < 4 else (kp - 4) * 4096, tag=('xr', ks))

                def mm(ks=ks):
                    e.wait(lg=[('xr', ks)])
                    e.mfma(G, X[4 * ks:4 * ks + 4], X[4 * ks:4 * ks + 4], G if ks else 0)
                    fill(o['pro_i'])
                    e.mfma16(SM, A16, X[4 * ks:4 * ks + 4], SM if ks else 0)
                    fill(o['pro_i'] // 2)
                mq.append(mm)

        def wdma(n, keep=0):
            for _ in range(n):
                n0 = len(e.vmq)
                while self.dma_q and len(e.vmq) == n0:
                    if e.probe(self.dma_q[0])[0][1] > 0:
                        fill(1)
                    self.pop_dma()
                if len(mq) > keep:
                    mq.popleft()()

        def bar1(ncons):
            need('w')
            e.wait(lg=[('xr', 4 * min(ncons, 4) - 1)])
            e.barrier()
            self.rlimit = RB + 16384 * min(ncons, 4)
            self.fill()

        self.issued = {}
        lag = o['pro_lag']
        for kp in range(9):
            if kp == o['pro_k']:
                need('mem')
                fill(o['pro_t'])
                need('xr')
                if o['pst']:
                    self.stamp('tabs')
            if kp >= lag:
                consume(kp - lag)
            if kp < 4:
                e.s('s_add_u32', 'm0', sM4, RB + kp * 16384)
            else:
                e.s('s_add_u32', 'm0', xs2, RB + 65536 + (kp - 4) * 4096)
            if kp:
                e.s('s_add_u32', xcur, xcur, 128)
                e.s('s_cmp_eq_u32', xcur, xend)
                e.s('s_cselect_b32', xcur, xbeg, xcur)
            else:
                fill(1)
            for c in range(4):
                e.dma(vDX[c], sX, xcur, tag=('x', kp), off=1024 * c, flags=o['xfl'])
                if kp < lag:
                    fill(o['pro_j'])
                if len(mq) > (4 if c == 0 else 0):
                    mq.popleft()()
            for f in self.xtra.get(kp, ()):
                need('mem')
                f()
            if kp == o['pro_w'] and kp < 8:
                bar1(kp - lag + 1)
                wdma(o['pro_wn'])
        xdone[0] = True
        if o['pst']:
            self.stamp('xiss')
        for kp in range(9 - lag, 9):
            consume(kp)
            if mq and len(mq) > 4:
                mq.popleft()()
            if kp == 9 - lag and o['pro_w'] >= 8:
                bar1(kp)
            if kp == 8:
                need('wpd')
                e.wait(vm='wp')
                e.ds('ds_write_b32', t[31], t[10], off=L_WP, tag='wpw')
                e.ds('ds_write_b32', t[32], t[11], off=L_WP, tag='wpw')
            wdma(o['pro_v'], 1)
            while len(mq) > 1:
                mq.popleft()()
        while mq:
            mq.popleft()()
        fill()
        e.wait(lg='all')
        e.barrier()
        if o['pst']:
            self.stamp('xbar')
        self.rlimit = REND
        self.fill()
        e.s('s_or_b32', sT0, sJ, sW)
        e.s('s_cmp_lg_u32', sT0, 0)
        e.other('s_cbranch_scc1 L_nordy')
        sl0 = e.slot
        e.ins('s_mov_b64 exec, 1', w=['exec'], cls='salu')
        e.ins(f'buffer_store_byte {vOne}, {t[12]}, {sDBG}, {sI} offen sc1', r=[vOne, t[12], sDBG, sI], cls='vmem')
        e.ins('s_mov_b64 exec, -1', w=['exec'], cls='salu')
        e.label('L_nordy')
        e.slot = sl0
        wdma(o['pro_x'])
        mean, var, t0, t1 = YB[7][8], YB[7][9], YB[7][10], YB[7][11]
        inv = fh(1.0 / 576.0)
        e.v('v_mul_f32', mean, inv, SM[0])
        for d in range(8):
            e.v('v_cndmask_b32', G[d], G[2 * d], G[2 * d + 1])
        e.v('v_cvt_pk_bf16_f32', W[0], 0, f'-{mean}', extra_r=[mean])
        e.ins('s_mov_b32 vcc_lo, 0xffff0000', w=['vcc'], cls='salu')
        e.ins('s_mov_b32 vcc_hi, 0xffff0000', w=['vcc'], cls='salu')
        for d in range(1, 16):
            e.v('v_mov_b32', W[d], W[0])
        self.spawn('norm', self.th_norm(), 0)

        def nm():
            self.run(self.pick(('mfma',), allow_stall=True))
            wdma(1)

        def sel(d, a_, b_, m):
            e.ins(f'v_cndmask_b32_e64 {d}, {a_}, {b_}, {m}', w=[d], r=[a_, b_, m])
        for d in range(4):
            sel(G[d], G[2 * d], G[2 * d + 1], sApair)
            if d == 1:
                nm()
        e.ins(f's_mov_b32 {sApair[0]}, 0xf0f0f0f0', w=[sApair[0]], cls='salu')
        e.ins(f's_mov_b32 {sApair[1]}, 0xf0f0f0f0', w=[sApair[1]], cls='salu')
        for d in range(2):
            sel(G[d], G[2 * d], G[2 * d + 1], sYpair)
        e.v('v_cndmask_b32', var, G[0], G[1])
        e.v('v_mov_b32', t0, var)
        nm()
        e.v('v_permlane32_swap_b32', var, t0)
        sel(var, var, t0, sApair)
        e.v('v_mul_f32', var, inv, var)
        e.v('v_fma_f32', var, f'-{mean}', mean, var, extra_r=[mean])
        e.v('v_max_f32', var, 0, var)
        e.v('v_cvt_pk_bf16_f32', t1, 0, var)
        nm()
        e.v('v_add_f32', t1, fh(1e-5), t1)
        e.v('v_cvt_pk_bf16_f32', t1, 0, t1)
        e.v('v_sqrt_f32', t1, t1)
        s2 = [(pat, b0, k, off) for (pat, b0) in ((vWm, 0), (vWe, 16)) for k, off in ((0, 0), (2, 160), (4, 320), (6, 480), (10, 640))]
        for pat, b0, k, off in s2[:2]:
            e.ds('ds_read_b64_tr_b16', AS[b0 + k:b0 + k + 2], pat, off=off, tag='s2')
        e.v('v_cvt_pk_bf16_f32', t1, 0, t1)
        nm()
        e.v('v_rcp_f32', vRinv, t1)
        for pat, b0, k, off in s2[2:4]:
            e.ds('ds_read_b64_tr_b16', AS[b0 + k:b0 + k + 2], pat, off=off, tag='s2')
        e.v('v_fma_f32', t0, f'-{t1}', vRinv, 1.0, extra_r=[t1])
        e.v('v_fma_f32', vRinv, t0, vRinv, vRinv)
        for pat, b0, k, off in s2[4:]:
            e.ds('ds_read_b64_tr_b16', AS[b0 + k:b0 + k + 2], pat, off=off, tag='s2')
        if o['stamps']:
            e.v('v_mov_b32', vStm, self.vs)
            self.vs = vStm
        self.stamp('x')

    def tables(self, t, r8, p8, rho, ph, xs2):
        e = self.e
        o = self.o
        junk = t[67]
        e.s('s_lshl_b32', sWg, sI, 4)
        e.s('s_add_u32', sWg, sWg, sJ)
        e.s('s_mul_i32', sT0, sJ, 1296)
        e.v('v_lshl_add_u32', t[9], vTid, 2, sT0)
        z = W[12:16]
        for k in range(4):
            e.v('v_mov_b32', z[k], 0)
        e.s('s_lshl_b32', sFo, sWg, 8)
        e.v('v_lshlrev_b32', t[16], 4, vTid)
        e.v('v_lshlrev_b32', t[66], 20, vLane)
        e.ds('ds_write_b128', t[16], z, off=0, tag='z')
        e.v('v_min_u32', t[17], 6400 - 4096 - 16, t[16])
        e.ds('ds_write_b128', t[17], z, off=4096, tag='z')
        e.mark('k')
        self.srd(sWQ, S(6, 2), 1990656)
        self.srd(sW1, S(14, 2), 5308416)
        self.srd(sWP, S(8, 2), 20736)
        self.srd(sWS, S(22, 2), 1 << 28)
        self.srd(sWO, S(10, 2), 663552)
        self.srd(sW2, S(16, 2), 5308416)
        re = e.e

        def tlbs():
            for srd_ in (sWQ, sW1, sW2, sWO)[:o['tlb']]:
                re.bload('buffer_load_dword', junk, t[66], srd_, 0, tag='pf')

        def mems():
            re.bload('buffer_load_dword', t[10], t[9], sWP, 0, tag='wp')
            re.s('s_cmp_lg_u32', sJ, 0)
            re.other('s_cbranch_scc1 L_noclr')
            sl0 = re.slot
            re.ins(f'buffer_store_dwordx4 {z}, {t[16]}, {sWS}, {sFo} offen sc1', r=[z, t[16], sWS, sFo], cls='vmem')
            re.label('L_noclr')
            re.slot = sl0
            re.bload('buffer_load_dword', t[11], t[9], sWP, 0, off=1024, tag='wp')
        self.xtra = {o['pro_tk']: [tlbs]}
        self.xtra.setdefault(o['pro_mk'], []).append(mems)
        e.mark('mem')
        self.srd(sOUT, S(18, 2), 2359296)
        self.srd(sDBG, S(20, 2), 256)
        e.s('s_mov_b32', sMask, '0xffff0000')
        e.s('s_mov_b32', sOne, '0x01010101')
        e.v('v_lshlrev_b32', vL16, 4, vLane)
        e.v('v_mov_b32', vOne, 1)
        e.v('v_lshlrev_b32', vW4, 6, sW)
        xr = [t[44 + n] for n in range(4)]
        xr2 = [t[48 + n] for n in range(4)]
        hk, tk, r_, c4, g1 = t[19], t[20], t[21], t[22], t[23]
        a, b, c_ = t[24], t[25], t[26]
        e.v('v_lshrrev_b32', hk, 5, vLane)
        e.v('v_and_b32', tk, 31, vLane)
        e.v('v_bfe_u32', r_, vLane, 2, 2)
        e.v('v_and_b32', c4, 3, vLane)
        e.v('v_bfe_u32', g1, vLane, 4, 1)
        e.v('v_xor_b32', a, p8, hk)
        e.v('v_lshlrev_b32', b, 7, tk)
        e.v('v_lshl_add_u32', a, a, 4, b)
        e.s('s_add_u32', sT0, sM4, RB)
        e.s('s_add_u32', sT1, xs2, RB + 65536)
        e.v('v_add_u32', xr[0], sT0, a)
        e.v('v_add_u32', xr2[0], sT1, a)
        for kk in range(1, 4):
            e.v('v_xor_b32', xr[kk], 32 * kk, xr[0])
            e.v('v_xor_b32', xr2[kk], 32 * kk, xr2[0])
        e.v('v_bfe_u32', a, vLane, 2, 1)
        e.v('v_mov_b32', b, '0x3f803f80')
        e.ins(f'v_cmp_eq_u32 vcc, {a}, {g1}', w=['vcc'], r=[a, g1])
        for d in range(4):
            e.v('v_cndmask_b32', YB[7][4 + d], 0, b)
        if o['stamps']:
            e.v('v_mov_b32', YB[5][0], 0)
            e.ins(f'v_writelane_b32 {YB[5][0]}, s64, 0', w=[YB[5][0]], r=[YB[5][0]])
            e.ins(f'v_writelane_b32 {YB[5][0]}, s66, 60', w=[YB[5][0]], r=[YB[5][0]])
        e.mark('xr')
        e.s('s_mul_i32', sT1, sJ, 72)
        e.s('s_lshr_b32', sT2, sJ, 1)
        e.s('s_mul_i32', sT2, sT2, 1152)
        for kp in range(9):
            e.s('s_mul_i32', sQb[kp], rho, 64 * 3456)
            e.s('s_add_u32', sQb[kp], sQb[kp], sT1)
            e.s('s_mul_i32', s1b[kp], rho, 64 * 9216)
            e.s('s_add_u32', s1b[kp], s1b[kp], sT2)
            if kp < 8:
                self.inc9(rho)
        e.s('s_and_b32', sRg, ph, o['rgm'])
        e.s('s_lshr_b32', sR2, ph, 1)
        e.s('s_and_b32', sR2, sR2, 3)
        e.s('s_and_b32', sC, sJ, 1)
        e.s('s_mov_b32', sLog, fh(LOG2E))
        e.s('s_lshl_b32', sM1, sW, 10)
        e.s('s_lshl_b32', sM2, sW, 11)
        e.s('s_lshl_b32', sT0, sW, 2)
        e.v('v_subrev_u32', a, sT0, vLane)
        e.v('v_and_b32', a, 15, a)
        e.v('v_min_u32', a, 14, a)
        e.v('v_mul_u32_u24', b, 13, a)
        e.v('v_lshrrev_b32', b, 6, b)
        e.v('v_mul_u32_u24', c_, 1152 - 80, b)
        e.v('v_lshl_add_u32', a, a, 4, c_)
        e.v('v_lshrrev_b32', b, 4, vLane)
        e.v('v_mul_u32_u24', b, 4 * 3456, b)
        e.s('s_mul_i32', sT0, sW, 3456)
        e.v('v_add3_u32', vDQ[0], a, b, sT0)
        for kk in range(1, 4):
            e.v('v_add_u32', vDQ[kk], kk * (16 * 3456 - 1024), vDQ[0])
        e.v('v_xor_b32', a, sC, g1)
        e.v('v_lshlrev_b32', a, 2, a)
        e.v('v_xor_b32', a, a, p8)
        e.v('v_mul_u32_u24', b, 9216, r8)
        e.v('v_lshl_add_u32', a, a, 4, b)
        c5 = sFp
        e.s('s_mul_i32', c5, sC, 5)
        e.s('s_add_u32', sT0, sRg, c5)
        e.s('s_lshl_b32', sT0, sT0, 7)
        e.s('s_mul_i32', sT3, sW, 16 * 9216)
        e.s('s_add_u32', sT0, sT0, sT3)
        e.v('v_add_u32', vD1[0], sT0, a)
        for c in range(1, 4):
            e.v('v_add_u32', vD1[c], c * (8 * 9216 - 1024), vD1[0])
        e.mark('w')
        e.s('s_add_u32', sT1, sRg, 1)
        e.s('s_and_b32', sT1, sT1, 3)
        e.s('s_add_u32', sT1, sT1, c5)
        e.s('s_lshl_b32', sT1, sT1, 7)
        e.s('s_cmp_lt_u32', sW, 2)
        e.s('s_cselect_b32', sT1, sT1, 512)
        e.s('s_and_b32', sT2, sW, 1)
        e.s('s_mul_i32', sT2, sT2, 32 * 9216)
        e.s('s_add_u32', sT1, sT1, sT2)
        e.s('s_add_u32', sT2, sRg, 2)
        e.s('s_and_b32', sT2, sT2, 3)
        e.s('s_add_u32', sT2, sT2, c5)
        e.s('s_lshl_b32', sT2, sT2, 7)
        e.s('s_add_u32', sT2, sT2, sT3)
        e.s('s_sub_u32', sT2, sT2, sT1)
        e.s('s_sub_u32', sT1, sT1, sT0)
        e.s('s_xor_b32', sFp, sFo, 256)
        sU_ = sPo[2]
        e.v('v_lshlrev_b32', a, 5, g1)
        e.v('v_lshl_add_u32', a, r_, 7, a)
        e.v('v_lshl_add_u32', a, c4, 3, a)
        e.v('v_bfe_u32', b, vLane, 3, 1)
        e.v('v_lshl_add_u32', a, b, 6, a)
        e.v('v_lshl_add_u32', vP1[0][0], hk, 10, a)
        e.v('v_xor_b32', vP1[1][0], 64, vP1[0][0])
        e.v('v_add_u32', vP1[0][1], HIW, vP1[0][0])
        e.v('v_add_u32', vP1[1][1], HIW, vP1[1][0])
        ap, hp, ch = t[27], t[28], t[29]
        e.v('v_lshrrev_b32', a, 1, c4)
        e.v('v_lshl_add_u32', ap, g1, 1, a)
        e.v('v_and_b32', hp, 1, c4)
        e.v('v_mul_u32_u24', ch, 5, hp)
        e.v('v_add_u32', ch, ch, ap)
        e.v('v_lshlrev_b32', b, 12, r_)
        e.v('v_lshl_add_u32', b, hk, 9, b)
        for tl in range(4):
            if tl < 3:
                e.v('v_lshl_add_u32', a, r_, 3, ch)
                e.v('v_add_u32', a, 10 * tl, a)
            else:
                e.v('v_min_u32', a, 2, ap)
                e.v('v_mul_u32_u24', a, 10, a)
                e.v('v_lshl_add_u32', a, r_, 3, a)
                e.v('v_add_u32', a, 4, a)
            e.v('v_and_b32', a, 31, a)
            e.v('v_lshl_add_u32', vAQ[tl][0], a, 3, b)
            e.v('v_add_u32', vAQ[tl][1], HIW, vAQ[tl][0])
        e.v('v_mul_u32_u24', a, 40, r_)
        e.v('v_mov_b32', c_, L_ZERO)
        for (pm, pe, base, hs) in ((vWm, vWe, L_WP, 800), (vKm, vKe, L_KVS, 1600)):
            e.v('v_mul_u32_u24', b, hs, hk)
            e.v('v_add_u32', b, b, a)
            if base:
                e.v('v_add_u32', b, base, b)
            e.v('v_lshl_add_u32', pm, ap, 3, b)
            e.v('v_add_u32', pe, 32, b)
            e.ins(f'v_cmp_eq_u32 vcc, {hk}, {hp}', w=['vcc'], r=[hk, hp])
            e.v('v_cndmask_b32', pm, c_, pm)
            e.v('v_cndmask_b32', pe, c_, pe)
            e.ins(f'v_cmp_eq_u32 vcc, 0, {ap}', w=['vcc'], r=[ap])
            e.v('v_cndmask_b32', pe, c_, pe)
        e.s('s_mul_i32', sT0, sW, 32 * 240)
        e.s('s_add_u32', sT0, sT0, L_T)
        e.v('v_mul_u32_u24', vTw, 240, tk)
        e.v('v_mul_u32_u24', a, 120, hk)
        e.v('v_add3_u32', vTw, vTw, a, sT0)
        e.v('v_lshl_add_u32', a, hk, 3, r_)
        e.v('v_mul_u32_u24', a, 240, a)
        e.v('v_lshl_add_u32', a, g1, 5, a)
        e.v('v_lshl_add_u32', a, c4, 3, a)
        e.s('s_lshr_b32', sT0, sW, 1)
        e.s('s_mul_i32', sT0, sT0, 120)
        e.s('s_add_u32', sT0, sT0, L_T)
        e.s('s_add_u32', sU_, sT0, 80)
        e.v('v_add_u32', vTa, sU_, a)
        e.s('s_and_b32', sU_, sW, 1)
        e.s('s_mul_i32', sU_, sU_, 40)
        e.s('s_add_u32', sU_, sU_, sT0)
        e.v('v_add_u32', vTb, sU_, a)
        e.s('s_mul_i32', sT0, sW, 2 * OWN)
        e.v('v_mul_u32_u24', a, OWN, g1)
        e.v('v_and_b32', b, 15, vLane)
        e.v('v_lshl_add_u32', a, b, 4, a)
        e.v('v_lshl_add_u32', a, hk, 8, a)
        e.v('v_add_u32', vPst, sT0, a)
        e.v('v_bfe_u32', a, vLane, 2, 1)
        e.v('v_bfe_u32', b, vLane, 3, 1)
        e.v('v_bfe_u32', c_, vLane, 1, 1)
        e.v('v_lshl_add_u32', b, b, 1, c_)
        e.v('v_and_b32', c_, 1, vLane)
        e.v('v_lshlrev_b32', c_, 4, c_)
        e.v('v_mov_b32', t[30], '0x3f80')
        e.v('v_lshlrev_b32', c_, c_, t[30])
        e.ins(f'v_cmp_eq_u32 vcc, {a}, {hk}', w=['vcc'], r=[a, hk])
        e.v('v_cndmask_b32', c_, 0, c_)
        e.v('v_lshl_add_u32', b, g1, 2, b)
        for d in range(8):
            e.ins(f'v_cmp_eq_u32 vcc, {d}, {b}', w=['vcc'], r=[b])
            e.v('v_cndmask_b32', V(32 + d), 0, c_)
        for f in self.tab2_pre():
            f()
        wpd = [t[31], t[32]]
        for rnd in range(2):
            idx, row, col, dst = t[24], t[25], t[26], wpd[rnd]
            e.v('v_add_u32', idx, 256 * rnd, vTid)
            e.v('v_min_u32', idx, 323, idx)
            e.v('v_mul_u32_u24', row, 7282, idx)
            e.v('v_lshrrev_b32', row, 16, row)
            e.v('v_mul_u32_u24', col, 9, row)
            e.v('v_sub_u32', col, idx, col)
            e.v('v_add_u32', idx, 20, row)
            e.v('v_subrev_u32', dst, 18, row)
            e.ins(f'v_cmp_gt_u32 vcc, 2, {dst}', w=['vcc'], r=[dst])
            e.v('v_cndmask_b32', row, row, idx)
            e.v('v_mul_u32_u24', dst, 40, row)
            e.v('v_lshl_add_u32', dst, col, 2, dst)
        e.ins(f'v_cmp_gt_u32 vcc, 68, {vTid}', w=['vcc'], r=[vTid])
        e.v('v_mov_b32', t[24], LDS_BYTES - 16)
        e.v('v_cndmask_b32', wpd[1], t[24], wpd[1])
        e.mark('wpd')
        for zz in (8, 9, 12, 13, 24, 25, 28, 29):
            e.v('v_accvgpr_write_b32', AS[zz], 0)
        for r, v_ in (('vcc_lo', 0xaaaaaaaa), ('vcc_hi', 0xaaaaaaaa), (sApair[0], 0xcccccccc), (sApair[1], 0xcccccccc),
                      (sYpair[0], 0xff00ff00), (sYpair[1], 0xff00ff00)):
            e.ins(f's_mov_b32 {r}, {hex(v_)}', w=['vcc' if isinstance(r, str) else r], cls='salu')
        for f in self.pf_setup():
            f()
        e.mark('xend')
        e.s('s_lshl_b32', sT0, sWg, 2)
        e.s('s_add_u32', sT0, sT0, sW)
        e.s('s_mul_i32', sHo, sT0, HXW)
        e.s('s_add_u32', sHo, sHo, WS_HX)
        e.s('s_xor_b32', sT0, sT0, 4)
        e.s('s_mul_i32', sHi, sT0, HXW)
        e.s('s_add_u32', sHi, sHi, WS_HX)
        e.s('s_lshl_b32', sT0, sI, 1)
        e.s('s_add_u32', sT0, sT0, sC)
        e.s('s_mul_i32', sT0, sT0, 8 * OWN)
        e.s('s_lshr_b32', sU_, sJ, 1)
        e.s('s_mul_i32', sU_, sU_, 9216)
        e.s('s_add_u32', sT0, sT0, sU_)
        for g in range(3):
            e.s('s_add_u32', sPo[g], sT0, WS_PART + 4096 * g)
        for f in self.clr_setup():
            f()

    def pack(self, d, a, b):
        return lambda: self.e.v('v_cvt_pk_bf16_f32', d, a, b)

    def v(self, *a, **k):
        return lambda: self.e.v(*a, **k)

    def s(self, *a):
        return lambda: self.e.s(*a)

    def flag(self, idx):
        e = self.e

        def f():
            e.ins('s_mov_b64 exec, 1', w=['exec'], cls='salu')
            e.bstore('buffer_store_dword', vOne, vW4, sWS, sFo, off=4 * idx, flags='sc1', tag='fl')
            e.ins('s_mov_b64 exec, -1', w=['exec'], cls='salu')
        return f

    def data(self, gen):
        for op in gen:
            if not isinstance(op, tuple):
                try:
                    op.data = True
                except AttributeError:
                    pass
            yield op

    def th_norm(self):
        e = self.e
        C, D = W[0:16], [W[16:32], W[32:48]]
        tt = [W[48], W[49]]

        def mm(n):
            d = D[n & 1]
            yield lambda: e.mfma(d, PL, X[8 * n:8 * n + 4], C)
            yield lambda: e.mfma(d, PH, X[8 * n + 4:8 * n + 8], d)

        yield from mm(0)
        for n in range(18):
            if n + 1 < 18:
                yield from mm(n + 1)
            d = D[n & 1]
            for q in range(8):
                t = tt[q & 1]
                yield from self.data([self.pack(d[2 * q], 0, d[2 * q]),
                                      self.pack(d[2 * q + 1], 0, d[2 * q + 1]),
                                      self.v('v_mul_f32', d[2 * q], d[2 * q], vRinv),
                                      self.v('v_mul_f32', d[2 * q + 1], d[2 * q + 1], vRinv),
                                      self.pack(t, d[2 * q], d[2 * q + 1]),
                                      self.v('v_accvgpr_write_b32', X[8 * n + q], t)])
                if q == 3:
                    yield ('set', f'norm{2 * n}')
            yield ('set', f'norm{2 * n + 1}')
        yield ('set', 'normdone')

    def poll(self, vaddr, srd, soff, imm, vt, spair, expect=1, delay=None):
        e = self.e
        tag = ('poll', e.newlabel('p'))
        slow, back = e.newlabel('L_slow'), e.newlabel('L_back')
        sidx = self.nslow
        self.nslow += 1
        self.slow_names.append(self.stepno)

        def ld():
            e.bload('buffer_load_dword', vt, vaddr, srd, soff, off=imm, flags='sc1', tag=tag)

        def cmpf():
            e.ins(f'v_cmp_ne_u32_e64 {spair}, {expect}, {vt}', w=[spair], r=[vt, expect])

        def br():
            e.ins(f's_cmp_lg_u64 {spair}, 0', w=['scc'], r=[spair], cls='salu')
            e.other(f's_cbranch_scc1 {slow}')
            e.label(back)

        yield ld
        yield ('delay', self.o['d_poll'] if delay is None else delay)
        yield lambda: e.wait(vm=[tag])
        yield cmpf
        yield ('delay', 1)
        yield br

        def slowpath():
            e.label(slow)
            e.s('s_mov_b32', sCnt, 0)
            lp = e.newlabel('L_spin')
            e.label(lp)
            if self.o['stamps']:
                e.s('s_add_u32', sCnt, sCnt, 1)
                e.ins(f'v_writelane_b32 {vStm}, {sCnt}, {48 + sidx}', w=[vStm], r=[vStm, sCnt])
                e.s('s_sub_u32', sCnt, sCnt, 1)
            e.other('s_sleep 4')
            ld()
            e.other('s_waitcnt vmcnt(0)')
            e.vmq = []
            cmpf()
            e.nop(4)
            e.ins(f's_cmp_eq_u64 {spair}, 0', w=['scc'], r=[spair], cls='salu')
            e.other(f's_cbranch_scc1 {back}')
            e.s('s_add_u32', sCnt, sCnt, 1)
            e.s('s_cmp_lt_u32', sCnt, 1 << 18)
            e.other(f's_cbranch_scc1 {lp}')
            e.other(f's_branch {back}')
        self.slow.append(slowpath)

    def th_ready(self):
        va, vt = YB[8][10], YB[8][11]
        yield ('until', self.o['rdy0'])
        yield from self.poll(va, sDBG, 0, 0, vt, sYpair, expect=sOne, delay=40)
        yield ('set', 'rdy')

    def clr_setup(self):
        m1, va = YB[8][0:4], YB[8][8:10]
        a, b, c = YB[8][12], YB[8][13], YB[8][14]
        for d in range(4):
            yield self.v('v_mov_b32', m1[d], -1)
        yield self.s('s_lshl_b32', sA0, sJ, 2)
        yield self.s('s_add_u32', sA0, sA0, sW)
        yield self.s('s_lshl_b32', sA1, sA0, 15)
        yield self.s('s_add_u32', sA1, sA1, WS_KVP)
        yield self.v('v_lshlrev_b32', va[1], 2, vLane)
        yield self.v('v_and_b32', YB[8][5], 15, vLane)
        yield self.v('v_lshl_add_u32', YB[8][5], YB[8][5], 12, vW4)
        yield self.v('v_and_b32', a, 3, vLane)
        yield self.v('v_lshlrev_b32', YB[8][10], 2, a)
        yield self.v('v_lshrrev_b32', b, 3, vLane)
        yield self.v('v_mul_u32_u24', c, 2048 - 128, b)
        yield self.v('v_add_u32', YB[8][6], c, vL16)
        yield self.v('v_add_u32', YB[8][7], 16384, YB[8][6])
        yield self.v('v_lshrrev_b32', b, 2, vLane)
        yield self.v('v_lshlrev_b32', c, 7, b)
        yield self.v('v_lshl_add_u32', b, a, 4, c)
        yield self.v('v_accvgpr_write_b32', HPa[43], b)
        yield self.v('v_lshl_add_u32', b, a, 3, c)
        yield self.v('v_accvgpr_write_b32', HPa[44], b)
        yield self.s('s_lshr_b32', sA0, sW, 1)
        yield self.s('s_mul_i32', sA0, sA0, 160)
        yield self.s('s_mul_i32', sR0, sW, 720)
        yield self.s('s_add_u32', sA0, sA0, sR0)
        yield self.v('v_min_u32', b, 44, vLane)
        yield self.v('v_lshl_add_u32', b, b, 4, sA0)
        yield self.v('v_accvgpr_write_b32', HPa[46], b)
        yield self.s('s_lshl_b32', sR0, sJ, 12)
        yield self.s('s_add_u32', sA0, sA0, sR0)
        yield self.s('s_add_u32', sA0, sA0, WS_KVF)
        yield self.v('v_lshrrev_b32', b, 4, vLane)
        yield self.v('v_lshl_add_u32', c, a, 2, b)
        yield self.v('v_and_b32', b, 1, b)
        yield self.v('v_lshl_add_u32', b, a, 1, b)
        yield self.v('v_add_u32', b, 16, b)
        yield self.v('v_sub_u32', b, b, c)
        yield self.v('v_bfe_u32', a, vLane, 2, 1)
        yield self.v('v_mad_i32_i24', c, a, b, c)
        yield self.v('v_lshl_add_u32', c, c, 1, sA0)
        yield self.v('v_accvgpr_write_b32', HPa[45], c)
        yield self.s('s_mul_i32', sR0, sI, 48)
        yield self.s('s_add_u32', sA0, sA0, sR0)
        yield self.v('v_add_u32', va[0], sA0, va[1])
        yield self.v('v_and_b32', a, 31, vLane)
        yield self.v('v_lshrrev_b32', b, 5, vLane)
        yield self.v('v_mad_u32_u24', a, a, 5, b)
        for n in range(3):
            if n:
                yield self.v('v_add_u32', a, 2, a)
            yield self.v('v_mul_u32_u24', b, 43, a)
            yield self.v('v_lshrrev_b32', b, 8, b)
            yield self.v('v_mul_u32_u24', b, 2048 - 96, b)
            yield self.v('v_lshl_add_u32', b, a, 4, b)
            yield self.v('v_accvgpr_write_b32', HPa[40 + n], b)
        yield self.s('s_lshl_b32', sA0, sI, 7)
        yield self.s('s_add_u32', sA0, sA0, sA1)
        yield self.s('s_add_u32', sR0, sHo, 18432)

    def clr_ops(self):
        e = self.e
        m1, va = YB[8][0:4], YB[8][8:10]
        sfl = 'sc1'
        dl = self.o['d_clr']
        yield lambda: e.bstore('buffer_store_dwordx4', m1, YB[8][6], sWS, sA0, flags=sfl, tag='clr')
        yield ('delay', dl)
        yield lambda: e.bstore('buffer_store_dwordx4', m1, YB[8][7], sWS, sA0, flags=sfl, tag='clr')
        yield lambda: e.bstore('buffer_store_dword', m1[0], va[0], sWS, 0, flags=sfl, tag='clr')
        yield ('set', 'clrk')
        yield ('delay', dl)
        for of in (0, 1024):
            yield lambda of=of: e.bstore('buffer_store_dwordx4', m1, vL16, sWS, sR0, off=of, flags=sfl, tag='clr2')
            yield ('delay', dl)
        yield lambda: e.bstore('buffer_store_dword', m1[0], va[1], sWS, sR0, off=2048, flags=sfl, tag='clr2')
        yield ('delay', 4)
        yield ('set', 'clr2')

    def th_clr3(self):
        e = self.e
        m1 = YB[2][0:4]
        yield ('until', 'hf3')
        yield ('until', self.o['clr3'])
        for d in range(4):
            yield self.v('v_mov_b32', m1[d], -1)
        for g, of in [(2, 0), (2, 512)] + ([(1, 512 * n) for n in range(8)] if self.o['rs1'] else []):
            yield lambda of=of, g=g: e.bstore('buffer_store_dwordx4', m1, vPst, sWS, sPo[g], off=of, flags='sc1', tag='clr3')
            yield ('delay', self.o['d_clr3'])
        yield ('set', 'clr3')

    def pf_setup(self):
        p1, t0, t1, pw = YB[7][12], YB[7][13], YB[7][14], YB[7][15]
        s0, s1 = sT0, sPo[2]
        yield self.s('s_and_b32', sPf, sI, 7)
        yield self.s('s_lshl_b32', s0, sPf, 1)
        yield self.s('s_add_u32', s0, s0, sC)
        yield self.s('s_lshl_b32', s0, s0, 2)
        yield self.s('s_add_u32', s0, s0, sW)
        yield self.s('s_mul_i32', s1, s0, 81)
        yield self.v('v_add_lshl_u32', pw, s1, vLane, 7)
        yield self.s('s_mul_i32', s0, s0, 9 * 9216)
        yield self.s('s_lshr_b32', s1, sJ, 1)
        yield self.s('s_mul_i32', s1, s1, 1152)
        yield self.s('s_add_u32', s0, s0, s1)
        yield self.v('v_min_u32', p1, 62, vLane)
        yield self.v('v_mul_u32_u24', t0, 37, p1)
        yield self.v('v_lshrrev_b32', t0, 8, t0)
        yield self.v('v_mul_u32_u24', t1, 7, t0)
        yield self.v('v_sub_u32', p1, p1, t1)
        yield self.v('v_lshrrev_b32', t1, 2, p1)
        yield self.v('v_add_lshl_u32', p1, p1, t1, 7)
        yield self.v('v_mul_u32_u24', t0, 9216, t0)
        yield self.v('v_add3_u32', p1, p1, t0, s0)

    def pf_slot(self, n, body):
        e = self.e

        def f():
            lb = f'L_pfs{e.uid}_{n}'
            if not e.dry:
                e.uid += 1
            e.s('s_cmp_lg_u32', sPf, n)
            e.other(f's_cbranch_scc1 {lb}')
            if not e.dry:
                sl0, q0 = e.slot, list(e.vmq)
                body()
                e.slot, e.vmq = sl0, q0
            e.label(lb)
        return f

    def th_pf1(self):
        e = self.e
        ev, gap, order = self.o['pf1']
        yield ('until', ev)
        for n in order:
            yield self.pf_slot(n, lambda: e.bload('buffer_load_dword', HPa[47], YB[7][12], sW1, 0, off=128, flags=self.o['pfl']))
            yield ('delay', gap)
        yield ('set', 'pf1')

    def th_pf(self):
        e = self.e
        pa, pj = vRinv, HPa[47]
        ev, gap, order = self.o['pf2']
        yield ('until', 'normdone')
        yield self.v('v_mov_b32', pa, YB[7][15])
        yield ('set', 'pfa')
        yield self.s('s_lshr_b32', 'vcc_hi', sJ, 1)
        yield self.s('s_lshl_b32', 'vcc_lo', 'vcc_hi', 3)
        yield self.s('s_add_u32', 'vcc_lo', 'vcc_lo', sPf)
        yield self.s('s_lshl_b32', 'vcc_lo', 'vcc_lo', 1)
        yield self.s('s_add_u32', 'vcc_lo', 'vcc_lo', sC)
        yield self.s('s_lshl_b32', 'vcc_lo', 'vcc_lo', 2)
        yield self.s('s_add_u32', 'vcc_lo', 'vcc_lo', sW)
        yield self.s('s_mul_i32', 'vcc_lo', 'vcc_lo', 1296)
        yield self.s('s_mul_i32', 'vcc_hi', 'vcc_hi', 5184 * 128)
        yield ('until', ev)

        fl = self.o['pfl']

        def body(n):
            e.bload('buffer_load_dword', pj, pa, sW2, 'vcc_hi', flags=fl)
            if self.o['pfo']:
                e.bload('buffer_load_dword', pj, vL16, sWO, 'vcc_lo', flags=fl)
            e.s('s_add_u32', sCnt, 'vcc_hi', 8192)
            e.ins('s_mov_b64 exec, 0x1ffff', w=['exec'], cls='salu')
            e.bload('buffer_load_dword', pj, pa, sW2, sCnt, flags=fl)
            if self.o['pfo']:
                e.bload('buffer_load_dword', pj, vL16, sWO, 'vcc_lo', off=1024, flags=fl)
            e.ins('s_mov_b64 exec, -1', w=['exec'], cls='salu')
        for n in order:
            yield self.pf_slot(n, lambda n=n: body(n))
            yield ('delay', gap)
        yield ('set', 'pf')

    def th_clr(self):
        e = self.e
        yield ('until', 'clrk')
        yield ('delay', 40)
        yield lambda: e.wait(vm='clr')
        yield ('until', 'rdy')
        yield self.flag(0)
        yield self.s('s_lshl_b32', sYpair[0], sJ, 8)
        yield ('delay', self.o['d_kvr'])
        yield from self.poll(YB[8][5], sWS, sYpair[0], 0, YB[8][4], sApair, delay=40)
        yield ('set', 'clr')

    def check(self, cmpf, spair, redo):
        e = self.e
        slow, back = e.newlabel('L_slow'), e.newlabel('L_back')
        sidx = self.nslow
        self.nslow += 1
        self.slow_names.append(self.stepno)

        def br():
            e.ins(f's_cmp_lg_u64 {spair}, 0', w=['scc'], r=[spair], cls='salu')
            e.other(f's_cbranch_scc1 {slow}')
            e.label(back)
        yield cmpf
        yield ('delay', 1)
        yield br

        def slowpath():
            e.label(slow)
            e.s('s_mov_b32', sCnt, 0)
            lp = e.newlabel('L_spin')
            e.label(lp)
            if self.o['stamps']:
                e.s('s_add_u32', sCnt, sCnt, 1)
                e.ins(f'v_writelane_b32 {vStm}, {sCnt}, {48 + sidx}', w=[vStm], r=[vStm, sCnt])
                e.s('s_sub_u32', sCnt, sCnt, 1)
            e.other('s_sleep 2')
            e.vmq = []
            redo()
            e.vmq = []
            e.fence_all()
            cmpf()
            e.nop(4)
            e.ins(f's_cmp_eq_u64 {spair}, 0', w=['scc'], r=[spair], cls='salu')
            e.other(f's_cbranch_scc1 {back}')
            e.s('s_add_u32', sCnt, sCnt, 1)
            e.s('s_cmp_lt_u32', sCnt, 1 << 16)
            e.other(f's_cbranch_scc1 {lp}')
            e.other(f's_branch {back}')
        self.slow.append(slowpath)

    def softmax(self, *a):
        return self.data(self.softmax_(*a))

    def softmax_(self, p, em, tmp, outp, outm):
        t0, t1, mx, mn = tmp
        for k in range(18):
            yield self.pack(p[k], 0, p[k])
        yield self.v('v_max_f32', mx, p[0], p[1])
        yield self.v('v_min_f32', mn, p[0], p[1])
        for k in range(1, 9):
            yield self.v('v_max3_f32', mx, mx, p[2 * k], p[2 * k + 1])
            yield self.v('v_min3_f32', mn, mn, p[2 * k], p[2 * k + 1])
        yield self.v('v_mul_f32', mx, sLog, mx)
        yield self.v('v_mul_f32', mn, sLog, mn)
        for k in range(18):
            yield self.v('v_fma_f32', em[k], f'-{p[k]}', sLog, mn, extra_r=[p[k]])
            yield self.v('v_fma_f32', p[k], p[k], sLog, f'-{mx}', extra_r=[mx])
        for k in range(18):
            yield self.v('v_exp_f32', em[k], em[k])
            yield self.v('v_exp_f32', p[k], p[k])
        yield self.v('v_add_f32', t1, em[0], em[1])
        yield self.v('v_add_f32', t0, p[0], p[1])
        for k in range(2, 18):
            yield self.v('v_add_f32', t1, t1, em[k])
            yield self.v('v_add_f32', t0, t0, p[k])
        yield self.v('v_rcp_f32', t1, t1)
        yield self.v('v_rcp_f32', t0, t0)
        for k in range(18):
            yield self.v('v_mul_f32', em[k], em[k], t1)
        for k in range(18):
            yield self.v('v_mul_f32', p[k], p[k], t0)
        for k in range(9):
            yield self.pack(outp[k], p[2 * k], p[2 * k + 1])
        for k in range(9):
            yield self.pack(outm[k], em[2 * k], em[2 * k + 1])

    def rdpack(self, *a):
        return self.data(self.rdpack_(*a))

    def rdpack_(self, dst, a0, a1, t0, t1):
        if a0.k == 'a':
            yield self.v('v_accvgpr_read_b32', t0, a0)
            yield self.v('v_accvgpr_read_b32', t1, a1)
            a0, a1 = t0, t1
        yield self.pack(dst, a0, a1)

    def th_attn(self):
        e = self.e
        o = self.o
        Pk, Px, Pq = W[0:16], W[16:32], W[32:48]
        KF, EF, QF = W[48:56], W[56:60], W[60:70]
        r0, r1, r2, r3 = W[0], W[1], W[2], W[3]
        q, k, vv, ex = QA
        yield ('until', 'qkv')
        yield ('until', 'normdone')
        yield ('until', 'clr')
        yield ('until', 'tab2v')
        for d in range(8):
            yield from self.rdpack(KF[d], k[2 * d], k[2 * d + 1], W[32 + 2 * (d & 1)], W[33 + 2 * (d & 1)])
        for d in range(4):
            yield from self.rdpack(EF[d], ex[2 * d], ex[2 * d + 1], W[32 + 2 * (d & 1)], W[33 + 2 * (d & 1)])
        VV = QF
        yield from self.rdpack(VV[8], ex[8], ex[9], W[32], W[33])
        yield from self.rdpack(VV[9], ex[10], ex[11], W[34], W[35])
        yield ('set', 'kxread')
        yield lambda: e.wait(lg='s2')
        yield lambda: e.mfma(Pk, AS[0:4], KF[0:4], 0)
        yield lambda: e.mfma(Px, AS[16:20], KF[0:4], 0)
        yield lambda: e.mfma(Pk, AS[4:8], KF[4:8], Pk)
        yield lambda: e.mfma(Px, AS[20:24], KF[4:8], Px)
        yield lambda: e.mfma(Pk, AS[8:12], EF, Pk)
        yield lambda: e.mfma(Px, AS[24:28], EF, Px)
        for d in range(8):
            yield from self.rdpack(VV[d], vv[2 * d], vv[2 * d + 1], W[32 + 2 * (d & 1)], W[33 + 2 * (d & 1)])

        def selx():
            e.ins(f'v_cmp_gt_u32_e64 {sApair}, 32, {vLane}', w=[sApair], r=[vLane])
            e.ins(f'v_cndmask_b32_e64 {VV[8]}, {VV[9]}, {VV[8]}, {sApair}', w=[VV[8]], r=[VV[8], VV[9], sApair])
        yield selx
        yield self.v('v_mov_b32', VV[9], '0x3f80')
        if self.dbg == 'kv':
            yield lambda: None if e.dry else self.dump([KF[d] for d in range(8)] + [EF[d] for d in range(4)] + [VV[d] for d in range(10)])
            return
        for d in range(5):
            yield lambda d=d: e.ds('ds_write_b64', vTw, VV[2 * d:2 * d + 2], off=80 + 8 * d, tag='tw')
        yield self.v('v_mov_b32', W[48], Px[0])
        yield self.v('v_mov_b32', W[49], Px[1])
        yield lambda: e.wait(lg='tw')
        for d in range(8):
            yield from self.rdpack(QF[d], q[2 * d], q[2 * d + 1], W[32 + 2 * (d & 1)], W[33 + 2 * (d & 1)])
        yield ('set', 'qaread')
        yield lambda: e.mfma(Pq, AS[0:4], QF[0:4], 0)
        yield lambda: e.mfma(Px, AS[16:20], QF[0:4], 0)
        yield lambda: e.mfma(Pq, AS[4:8], QF[4:8], Pq)
        yield lambda: e.mfma(Px, AS[20:24], QF[4:8], Px)
        yield lambda: e.mfma(Pq, AS[10:14], EF, Pq)
        yield lambda: e.mfma(Px, AS[26:30], EF, Px)
        yield ('set', 'pqm')
        sm = self.softmax([Pk[d] for d in range(16)] + [W[48], W[49]], [Px[d] for d in range(16)] + [W[52], W[53]],
                          [W[54], W[55], W[60], W[61]], [Pk[d] for d in range(9)], [Px[d] for d in range(9)])
        if self.dbg == 'p':
            yield self.v('v_mov_b32', W[50], Px[0])
            yield self.v('v_mov_b32', W[51], Px[1])
            yield lambda: None if e.dry else self.dump([Pk[d] for d in range(16)] + [W[48], W[49]] + [Pq[d] for d in range(16)] + [W[50], W[51]])
            return
        for n, op in enumerate(sm):
            if n == 31:
                yield self.v('v_mov_b32', W[50], Px[0])
                yield self.v('v_mov_b32', W[51], Px[1])
            yield op
        yield self.v('v_mov_b32', Pk[9], 0)
        yield self.v('v_mov_b32', Px[9], 0)
        for d in range(5):
            yield lambda d=d: e.ds('ds_write_b64', vTw, Pk[2 * d:2 * d + 2], off=8 * d, tag='tw')
            yield lambda d=d: e.ds('ds_write_b64', vTw, Px[2 * d:2 * d + 2], off=40 + 8 * d, tag='tw')
        ka = [YB[3][n] for n in range(7)]
        for n in range(3):
            yield self.v('v_accvgpr_read_b32', ka[n], HPa[40 + n])
        yield ('delay', 2)

        def bar():
            e.wait(lg='tw')
            e.barrier()
        yield bar
        KV = Pk
        for ks in range(8 + 3):
            if ks < 8:
                fa, fb = AS[8 * (ks % 4):8 * (ks % 4) + 4], AS[8 * (ks % 4) + 4:8 * (ks % 4) + 8]
                of = ks * 16 * 240
                yield lambda fa=fa, of=of, ks=ks: e.ds('ds_read_b64_tr_b16', fa[0:2], vTa, off=of, tag=('kv', ks))
                yield lambda fa=fa, of=of, ks=ks: e.ds('ds_read_b64_tr_b16', fa[2:4], vTa, off=of + 960, tag=('kv', ks))
                yield lambda fb=fb, of=of, ks=ks: e.ds('ds_read_b64_tr_b16', fb[0:2], vTb, off=of, tag=('kv', ks))
                yield lambda fb=fb, of=of, ks=ks: e.ds('ds_read_b64_tr_b16', fb[2:4], vTb, off=of + 960, tag=('kv', ks))
            else:
                yield ('delay', 1)
            m = ks - 3
            if m >= 0:
                yield lambda m=m: e.wait(lg=[('kv', m)])
                yield lambda m=m: e.mfma(KV, AS[8 * (m % 4):8 * (m % 4) + 4], AS[8 * (m % 4) + 4:8 * (m % 4) + 8], 0 if m == 0 else KV)
        yield ('set', 'tread')
        yield ('spawn', 'smq', self.th_smq(), self.o['prio'][3])
        yield ('delay', 2)

        def kvst():
            e.ins('s_mov_b64 exec, 0x3ffff', w=['exec'], cls='salu')
            e.bstore('buffer_store_dwordx4', KV[8:12], ka[2], sWS, sA0, flags='sc1', tag='kvst')
            e.ins('s_mov_b32 exec_hi, 0x3ffff', w=['exec'], cls='salu')
            e.bstore('buffer_store_dwordx4', KV[0:4], ka[0], sWS, sA0, flags='sc1', tag='kvst')
            e.bstore('buffer_store_dwordx4', KV[4:8], ka[1], sWS, sA0, flags='sc1', tag='kvst')
            e.ins('s_mov_b64 exec, -1', w=['exec'], cls='salu')
        yield kvst
        yield ('set', 'kvflag')
        t_g = self.stepno
        for n in range(3, 7):
            yield self.v('v_accvgpr_read_b32', ka[n], HPa[40 + n])
        yield ('set', 'gsum')
        yield self.s('s_min_u32', sA0, sI, 14)
        yield self.s('s_lshl_b32', sA0, sA0, 11)
        yield self.s('s_add_u32', sA0, sA0, sA1)
        yield self.s('s_min_u32', sA1, sI, 14)
        yield self.s('s_mul_i32', sA1, sA1, 48)
        yield ('delay', max(1, o['d_kv'] - (self.stepno - t_g)))
        yield ('set', 'kvpolled')
        A_, B_ = YB[3][8:12], YB[3][12:14]

        def gl():
            yield lambda: e.bload('buffer_load_dwordx4', A_, ka[3], sWS, sA0, flags='sc1', tag='kvl')
            yield lambda: e.bload('buffer_load_dwordx2', B_, ka[4], sWS, sA0, off=64, flags='sc1', tag='kvl')

        def sel(d, a_, b_):
            return lambda: e.ins(f'v_cndmask_b32_e64 {d}, {a_}, {b_}, {sApair}', w=[d], r=[a_, b_, sApair])

        def dpp(d, a_, b_, n):
            return lambda: e.ins(f'v_add_f32_dpp {d}, {a_}, {b_} row_ror:{n} row_mask:0xf bank_mask:0xf', w=[d], r=[a_, b_], cls='perm')

        def gsum():
            yield self.s('s_mov_b32', sApair[0], '0xf0f0f0f0')
            yield self.s('s_mov_b32', sApair[1], '0xf0f0f0f0')
            for x_, y_ in ((A_[0], A_[1]), (A_[2], A_[3]), (B_[0], B_[1])):
                yield self.v('v_permlane16_swap_b32', x_, y_)
            for x_, y_ in ((B_[0], B_[1]), (A_[0], A_[1]), (A_[2], A_[3])):
                yield self.v('v_add_f32', x_, x_, y_)
            yield self.v('v_mov_b32', B_[1], B_[0])
            yield self.v('v_permlane32_swap_b32', A_[0], A_[2])
            yield self.v('v_permlane32_swap_b32', B_[0], B_[1])
            yield self.v('v_add_f32', A_[0], A_[0], A_[2])
            yield self.v('v_add_f32', B_[0], B_[0], B_[1])
            yield sel(A_[2], B_[0], A_[0])
            yield sel(A_[1], A_[0], B_[0])
            yield dpp(A_[1], A_[2], A_[1], 4)
            yield dpp(A_[1], A_[1], A_[1], 8)
        yield from gl()
        yield ('delay', o['d_gl'])
        yield lambda: e.wait(vm='kvl')
        yield from gsum()

        def redo_kv():
            for f in gl():
                f()
            e.other('s_waitcnt vmcnt(0)')
            for f in gsum():
                f()
        yield from self.check(lambda: e.ins(f'v_cmp_u_f32_e64 {sApair}, {A_[1]}, {A_[1]}', w=[sApair], r=[A_[1]]), sApair, redo_kv)
        yield self.pack(A_[1], A_[1], A_[1])
        yield lambda: e.bstore('buffer_store_short', A_[1], ka[5], sWS, sA1, flags='sc1', tag='kvst')
        yield ('set', 'kv2')
        yield self.s('s_lshl_b32', sA0, sJ, 12)
        yield self.s('s_add_u32', sA0, sA0, WS_KVF)
        yield ('delay', o['d_kv2'])
        F_ = W[0:4]

        def fl():
            yield lambda: e.bload('buffer_load_dwordx4', F_, ka[6], sWS, sA0, flags='sc1', tag='kvf')

        def fchk():
            yield self.v('v_pk_max_u16', B_[0], F_[0], F_[1])
            yield self.v('v_pk_max_u16', B_[1], F_[2], F_[3])
            yield self.v('v_pk_max_u16', B_[0], B_[0], B_[1])
            yield self.v('v_lshlrev_b32', B_[1], 16, B_[0])
            yield self.v('v_max_u32', B_[0], B_[0], B_[1])
        yield from fl()
        yield ('delay', o['d_gl'])
        yield lambda: e.wait(vm='kvf')
        yield from fchk()

        def redo_f():
            for f in fl():
                f()
            e.other('s_waitcnt vmcnt(0)')
            for f in fchk():
                f()
        yield from self.check(lambda: e.ins(f'v_cmp_le_u32_e64 {sApair}, {sMask}, {B_[0]}', w=[sApair], r=[sMask, B_[0]]), sApair, redo_f)
        yield lambda: e.ds('ds_write_b128', ka[6], F_, off=L_KVS, tag='kvs')
        yield ('until', 'hf1')
        yield ('delay', 2)
        yield ('until', 'pq')

        def bar2():
            e.wait(lg='kvs')
            e.barrier()
        yield bar2
        N, Nx = W[0:16], W[16:32]
        PQ = W[32:52]
        fr = GB
        for t_ in range(5):
            for which, pat in ((0, vKm), (1, vKe)):
                f = fr[2 * t_ + which]
                yield lambda f=f, pat=pat, t_=t_: e.ds('ds_read_b64_tr_b16', f[0:2], pat, off=320 * t_, tag=('nd', t_))
                yield lambda f=f, pat=pat, t_=t_: e.ds('ds_read_b64_tr_b16', f[2:4], pat, off=320 * t_ + 160, tag=('nd', t_))
        yield ('delay', 2)
        for m in range(5):
            yield lambda m=m: e.wait(lg=[('nd', m)])
            yield lambda m=m: e.mfma(Nx, fr[2 * m + 1], PQ[4 * m:4 * m + 4], 0 if m == 0 else Nx)
            yield lambda m=m: e.mfma(N, fr[2 * m], PQ[4 * m:4 * m + 4], 0 if m == 0 else N)
        yield ('set', 'xlow')
        if self.dbg == 'num':
            yield lambda: None if e.dry else self.dump([N[d] for d in range(16)] + [Nx[d] for d in range(4)])
            return
        OF = self.OF
        yield ('until', 'hf2')
        den, t0 = Nx[4], Nx[5]
        yield self.pack(den, 0, Nx[2])
        yield self.v('v_add_f32', den, fh(1e-6), den)
        yield self.pack(den, 0, den)
        yield self.v('v_rcp_f32', t0, den)
        yield self.v('v_mov_b32', OF[10], 0)
        yield self.v('v_fma_f32', den, f'-{den}', t0, 1.0, extra_r=[den])
        yield self.v('v_fma_f32', t0, den, t0, t0)
        yield self.v('v_mov_b32', OF[11], 0)
        nums = [Nx[0], Nx[1]] + [N[d] for d in range(16)]
        for kk in range(9):
            tt = Nx[6 + (kk & 1)]
            a_, b_ = nums[2 * kk], nums[2 * kk + 1]
            yield self.pack(a_, 0, a_)
            yield self.pack(b_, 0, b_)
            yield self.v('v_mul_f32', a_, a_, t0)
            yield self.v('v_mul_f32', b_, b_, t0)
            yield self.pack(OF[8] if kk == 0 else OF[kk - 1], a_, b_)
        yield ('set', 'of')
        yield self.s('s_add_u32', sA0, sHo, 18432)
        yield self.v('v_lshlrev_b32', Nx[8], 2, vLane)
        yield lambda: e.bstore('buffer_store_dwordx4', OF[0:4], vL16, sWS, sA0, off=0, flags='sc1', tag='ost')
        yield lambda: e.bstore('buffer_store_dwordx4', OF[4:8], vL16, sWS, sA0, off=1024, flags='sc1', tag='ost')
        yield lambda: e.bstore('buffer_store_dword', OF[8], Nx[8], sWS, sA0, off=2048, flags='sc1', tag='ost')
        yield self.s('s_add_u32', sA0, sHi, 18432)
        yield ('delay', o['d_o'])

        def old_():
            yield lambda: e.bload('buffer_load_dwordx4', self.OP[0:4], vL16, sWS, sA0, off=0, flags='sc1', tag='old')
            yield lambda: e.bload('buffer_load_dwordx4', self.OP[4:8], vL16, sWS, sA0, off=1024, flags='sc1', tag='old')
            yield lambda: e.bload('buffer_load_dword', OF[9], Nx[8], sWS, sA0, off=2048, flags='sc1', tag='old')

        def ochk():
            OP = self.OP
            yield self.v('v_max3_u32', Nx[10], OP[0], OP[1], OP[2])
            yield self.v('v_max3_u32', Nx[11], OP[3], OP[4], OP[5])
            yield self.v('v_max3_u32', Nx[10], Nx[10], OP[6], OP[7])
            yield self.v('v_max3_u32', Nx[10], Nx[10], Nx[11], OF[9])
        yield ('until', 'hpol0')
        yield from old_()
        yield ('delay', o['d_load'])
        yield lambda: e.wait(vm='old')
        yield from ochk()

        def redo_o():
            for f in old_():
                f()
            e.other('s_waitcnt vmcnt(0)')
            for f in ochk():
                f()
        yield from self.check(lambda: e.ins(f'v_cmp_eq_u32_e64 {sApair}, -1, {Nx[10]}', w=[sApair], r=[Nx[10]]), sApair, redo_o)
        yield ('set', 'op')
        if self.dbg == 'o':
            yield lambda: None if e.dry else self.dump([OF[d] for d in range(12)] + [self.OP[d] for d in range(8)])

    def hflag(self, g, tag, vt, spair):
        e = self.e
        yield ('delay', self.o['d_ack'])
        yield lambda: e.wait(vm=tag)
        yield self.flag(1 + g)
        yield ('delay', self.o['d_vis'])
        yield from self.poll(vW4, sWS, sFp, 4 + 4 * g, vt, spair)

    def th_smq(self):
        Pq, Px = W[32:48], W[16:32]
        yield from self.softmax([Pq[d] for d in range(16)] + [W[50], W[51]], [Px[d] for d in range(16)] + [W[52], W[53]],
                                [W[54], W[55], W[60], W[61]], [W[32 + d] for d in range(9)], [W[41 + d] for d in range(9)])
        yield self.v('v_mov_b32', W[50], 0)
        yield self.v('v_mov_b32', W[51], 0)
        yield ('set', 'pq')

    def th_relu(self, g3):
        e = self.e
        if g3:
            yield ('until', f'hf{g3 - 1}')
        if True:
            yield ('until', f'acc{g3}')
            for t, acc in enumerate(FACC[g3]):
                Ts = HG[g3][0] + t
                for d in range(0, 8, 2):
                    yield self.pack(HS[Ts][d], acc[2 * d], acc[2 * d + 1])
                    yield self.pack(HS[Ts][d + 1], acc[2 * d + 2], acc[2 * d + 3])
                    yield self.v('v_pk_max_i16', HS[Ts][d], HS[Ts][d], 0)
                    yield self.v('v_pk_max_i16', HS[Ts][d + 1], HS[Ts][d + 1], 0)
                yield ('set', f'hr{Ts}')
            yield ('set', f'hf{g3}')

    def th_hst(self):
        e = self.e
        yield ('until', 'clr')
        yield ('until', 'clr2')
        for g3 in range(4):
            for Ts in range(*HG[g3]):
                yield ('until', f'hr{Ts}')
                yield self.s('s_add_u32', sR0, sHo, 2048 * Ts)
                for hh in range(2):
                    yield self.paced(lambda Ts=Ts, hh=hh, g3=g3: e.bstore('buffer_store_dwordx4', HS[Ts][4 * hh:4 * hh + 4], vL16, sWS, sR0,
                                                                          off=1024 * hh, flags=self.o['sfl'], tag=('hst', g3)))
            yield ('spawn', f'himp{g3}', self.th_himp(g3), self.o['prio'][4])

    def th_himp(self, g3):
        e = self.e
        yield ('until', 'rdy')
        yield ('until', 'tab2')
        yield ('until', 'pqm')
        if g3 == 1:
            yield ('until', 'pf')
        if g3 == 3:
            yield ('until', 'hp0')
        yield from self.hflag(g3, [('hst', g3)], W[66 + g3], sHp[g3])
        yield ('set', f'hpol{g3}')
        if g3 >= 2:
            yield ('until', 'gsum')
            yield ('until', 'pf')
        for Ts in range(*HG[g3]):
            yield self.s('s_add_u32', sHs[g3], sHi, 2048 * Ts)
            for hh in range(2):
                yield lambda Ts=Ts, hh=hh: e.bload('buffer_load_dwordx4', HPS[Ts][4 * hh:4 * hh + 4], vL16, sWS, sHs[g3],
                                                   off=1024 * hh, flags=self.o['lfl'], tag=('hld', g3))
        yield ('delay', self.o['d_hl'])
        yield lambda: e.wait(vm=[('hld', g3)])
        yield ('set', f'hp{g3}')
        if self.dbg == 'h' and g3 == 3:
            yield ('until', 'hp1')
            yield ('until', 'hp2')
            yield lambda: None if e.dry else self.dump([HS[d // 8][d % 8] for d in range(72)] + [HPS[d // 8][d % 8] for d in range(72)])

    def tab2_pre(self):
        e = self.e
        a, b = W[68], W[69]
        s0, s1 = sZ0, sO0
        pD2, pDO = PKV[4:8], PKV[8:10]
        pU, pPb = PKS[0:4] + [sU[4]], PKS[4:8]
        yield self.v('v_lshrrev_b32', a, 5, vLane)
        yield self.v('v_lshlrev_b32', a, 9, a)
        for t in range(2):
            for h in range(2):
                yield self.v('v_sub_u32', PKV[2 * t + h], vP1[t][h], a)
        yield self.v('v_bfe_u32', a, vLane, 4, 1)
        yield self.v('v_xor_b32', a, sC, a)
        yield self.v('v_lshlrev_b32', a, 2, a)
        yield self.v('v_and_b32', b, 7, vLane)
        yield self.v('v_xor_b32', a, a, b)
        yield self.v('v_lshrrev_b32', b, 3, vLane)
        yield self.v('v_mul_u32_u24', b, 1152, b)
        yield self.v('v_lshl_add_u32', a, a, 4, b)
        yield self.s('s_and_b32', s1, sW, 1)
        yield self.s('s_mul_i32', s1, s1, 16 * 1152)
        yield self.s('s_mul_i32', s0, sC, 32 * 1152)
        yield self.s('s_add_u32', s0, s0, s1)
        yield self.v('v_add_u32', pD2[0], s0, a)
        yield self.v('v_add_u32', pD2[1], 8 * 1152 - 1024, pD2[0])
        yield self.s('s_mul_i32', s0, sC, -32 * 1152)
        yield self.s('s_add_u32', s0, s0, s1)
        yield self.s('s_add_u32', s0, s0, 32 * 1152)
        yield self.v('v_add_u32', pD2[2], s0, a)
        yield self.v('v_add_u32', pD2[3], 8 * 1152 - 1024, pD2[2])
        yield self.s('s_lshr_b32', s0, sW, 1)
        yield self.s('s_xor_b32', s0, s0, sJ)
        yield self.s('s_mul_i32', s0, s0, 36 * 1152)
        yield self.s('s_lshr_b32', s1, s1, 1)
        yield self.s('s_add_u32', s0, s0, s1)
        yield self.v('v_add_u32', pDO[0], s0, a)
        yield self.v('v_add_u32', pDO[1], 20 * 1152 - 1024, pDO[0])
        yield self.s('s_lshr_b32', s0, sJ, 1)
        yield self.s('s_mul_i32', s0, s0, 576 * 1152)
        yield self.s('s_lshr_b32', s1, sW, 1)
        yield self.s('s_add_u32', pU[0], s1, sRg)
        yield self.s('s_add_u32', pU[1], pU[0], 2)
        for p in range(2):
            yield self.s('s_and_b32', pU[p], pU[p], 3)
            yield self.s('s_mul_i32', pU[p], pU[p], 64 * 1152)
            yield self.s('s_add_u32', pU[p], pU[p], s0)
        yield self.s('s_mul_i32', pU[4], sC, -64 * 1152)
        yield self.s('s_add_u32', pU[4], pU[4], 32 * 1152)
        yield self.s('s_mul_i32', pU[4], pU[4], s1)
        yield self.s('s_add_u32', pU[4], pU[4], s0)
        yield self.s('s_add_u32', pU[4], pU[4], 256 * 1152)
        yield self.s('s_mul_i32', s1, sC, 320 * 1152)
        yield self.s('s_sub_u32', s0, 320 * 1152, s1)
        for p in range(2):
            yield self.s('s_add_u32', pU[2 + p], pU[p], s0)
            yield self.s('s_add_u32', pU[p], pU[p], s1)
        yield self.s('s_mul_i32', s1, sC, 640)
        for u in range(4):
            yield self.s('s_add_u32', s0, sR2, u)
            yield self.s('s_and_b32', s0, s0, 3)
            yield self.s('s_lshl_b32', s0, s0, 7)
            yield self.s('s_add_u32', pPb[u], s0, s1)
        yield self.v('v_add_u32', PKV[10], sM1, vL16)
        yield self.v('v_and_b32', b, 15, vLane)
        yield self.v('v_mul_u32_u24', b, 1152, b)
        yield self.v('v_and_b32', a, 48, vLane)
        yield self.v('v_add_u32', PKV[11], a, b)
        yield self.v('v_lshrrev_b32', a, 3, vLane)
        yield self.v('v_add_u32', a, sR2, a)
        yield self.v('v_and_b32', a, 3, a)
        yield self.v('v_lshl_add_u32', a, a, 7, s1)
        yield self.v('v_mov_b32', b, 512)

        def selw():
            e.ins(f'v_cmp_gt_u32 vcc, 32, {vLane}', w=['vcc'], r=[vLane])
            e.v('v_cndmask_b32', a, b, a)
        yield selw
        yield self.v('v_and_b32', b, 7, vLane)
        yield self.s('s_lshl_b32', s0, sC, 2)
        yield self.v('v_xor_b32', b, s0, b)
        yield self.v('v_lshl_add_u32', PKV[12], b, 4, a)
        yield self.s('s_and_b32', s0, sW, 1)
        yield self.s('s_xor_b32', s0, s0, sJ)
        yield self.s('s_mul_i32', s0, s0, 36)
        yield self.s('s_and_b32', s1, sW, 2)
        yield self.s('s_add_u32', s0, s0, s1)
        yield self.s('s_add_u32', s0, s0, 16)
        yield self.s('s_mul_i32', s0, s0, 1152)
        yield self.s('s_add_u32', s1, s0, 1152 - 1024)
        yield self.v('v_bfe_u32', a, vLane, 2, 2)
        yield self.v('v_lshrrev_b32', b, 5, vLane)
        yield self.v('v_lshl_add_u32', a, b, 2, a)
        yield self.v('v_lshlrev_b32', a, 10, a)
        yield self.v('v_bfe_u32', b, vLane, 4, 1)
        yield self.v('v_lshl_add_u32', a, b, 5, a)
        yield self.v('v_and_b32', b, 3, vLane)
        yield self.v('v_lshl_add_u32', a, b, 3, a)
        yield self.v('v_add_u32', PKV[13], L_T, a)

    def th_tab2(self):
        e = self.e
        s0, s1 = sZ0, sO0
        yield ('until', 'qkv')
        for n in range(12):
            yield self.v('v_mov_b32', V(6 + n), PKV[n])
        yield self.v('v_mov_b32', vWe, PKV[12])
        yield self.v('v_mov_b32', vWm, PKV[13])
        yield ('set', 'tab2v')
        for n in range(4):
            yield self.s('s_mov_b32', sU[n], PKS[n])
            yield self.s('s_mov_b32', sPb[n], PKS[4 + n])
        yield self.s('s_mov_b32', sPb[4], 512)
        yield ('set', 'tab2')
        yield ('until', 'tread')
        yield ('until', f'sync{self.synced + 1}')

        def wox():
            e.s('s_add_u32', 'm0', sM2, L_T)
            e.dma(vWe, sWO, s0, tag=('wox', -1))
            e.dma(vWe, sWO, s1, tag=('wox', -1), off=1024)
            if not e.dry:
                self.ev.add('woxi')
        wox.heavy = True
        self.dma_q.append(wox)
        yield ('until', 'woxi')
        self.vWX = vWm
        yield ('delay', 40)
        yield lambda: e.wait(vm=[('wox', -1)])
        yield ('until', f'sync{self.synced + 1}')
        yield ('set', 'wox')

    def odst(self, n):
        return YB[2][8 * (n & 1):8 * (n & 1) + 8] if n < 8 else YB[8][0:8]

    def paced(self, f):
        f.paced = True
        return f

    def th_out(self):
        e = self.e
        yield ('until', 'clr3')
        for n in range(9):
            yield ('until', f'tile{n}')
            if 2 <= n < 8:
                yield ('until', f'out{n - 2}')
            acc, D = self.gacc[n], self.odst(n)
            for d in range(8):
                yield from self.rdpack(D[d], acc[2 * d], acc[2 * d + 1], YB[0][12 + 2 * (d & 1)], YB[0][13 + 2 * (d & 1)])
            for h2 in range(2):
                yield self.v('v_permlane32_swap_b32', D[4 * h2], D[4 * h2 + 2])
                yield self.v('v_permlane32_swap_b32', D[4 * h2 + 1], D[4 * h2 + 3])
            yield ('set', f'pk{n}')

    def th_pst(self):
        e = self.e
        for n in range(9):
            yield ('until', f'pk{n}')
            D = self.odst(n)
            for h2 in range(2):
                f = lambda h2=h2, n=n, D=D: e.bstore('buffer_store_dwordx4', D[4 * h2:4 * h2 + 4], vPst, sWS, sPo[n // 4],
                                                     off=1024 * (n % 4) + 512 * h2, flags=self.o['sfl'], tag=('pst', n // 4))
                yield self.paced(f) if n < 6 else f
            yield ('set', f'out{n}')
            if n in (1, 5, 7):
                g = {1: 0, 5: 1, 7: 2}[n]
                yield ('spawn', f'red{g}', self.th_red(g), 0)

    def th_red(self, g):
        e = self.e
        o = self.o
        acc = W[16 * g:16 * g + 16]
        b0 = (0, 64, 96)[g]
        buf = [X[b0 + 4 * n:b0 + 4 * n + 4] for n in range(8)] + [X[128 + 4 * g:132 + 4 * g]]
        sa, sb, sp = sZa[g], sZb[g], sZp[g]
        va, vt, vf = acc[0], acc[1], acc[2]
        fl = g == 0 or (g == 1 and not o['rs1'])
        if fl:
            yield self.s('s_lshl_b32', sa, sI, 4)
            yield self.s('s_add_u32', sa, sa, sC)
            yield self.s('s_lshl_b32', sa, sa, 2)
            yield self.s('s_lshr_b32', sb, sJ, 2)
            yield self.s('s_add_u32', sa, sa, sb)
            yield self.s('s_lshl_b32', sa, sa, 6)
            yield self.v('v_and_b32', va, 7, vLane)
            yield self.v('v_lshl_add_u32', va, va, 9, sa)
        yield self.s('s_lshr_b32', sb, sWg, 1)
        yield self.s('s_mul_i32', sb, sb, 16 * 1152)
        if g < 2:
            ri, ro = vRi, vRo

            def colsel():
                e.s('s_cmp_lt_u32', sW, 2)
                e.s('s_cselect_b32', sp[0], sPb[2 * g], sPb[2 * g + 1])
            yield colsel
            yield self.s('s_add_u32', sb, sb, sp[0])
            yield self.s('s_xor_b32', sp[0], sW, sC)
            yield self.s('s_and_b32', sp[0], sp[0], 1)
        else:
            ri, ro = W[64], W[65]
            yield self.v('v_and_b32', ro, 15, vLane)
            yield self.s('s_lshl_b32', sp[0], sW, 8)
            yield self.v('v_lshl_add_u32', ri, ro, 4, sp[0])
            yield self.v('v_mul_u32_u24', ro, 1152, ro)
            yield self.s('s_lshl_b32', sp[0], sW, 4)
            yield self.s('s_add_u32', sb, sb, sp[0])
            yield self.s('s_add_u32', sb, sb, 512)
            yield self.s('s_mov_b32', sp[0], sC)
        yield self.s('s_lshl_b32', sp[0], sp[0], 6)
        yield self.s('s_add_u32', sb, sb, sp[0])
        yield lambda: e.bload('buffer_load_dwordx4', buf[8], ro, sX, sb, tag=('rl', g, 8))
        yield ('until', f'out{min(4 * g + 3, 8)}')
        if fl:
            yield ('delay', o['d_ack'])
            yield lambda: e.wait(vm=[('pst', g)])
            yield self.flag(5 + g)
        yield ('set', f'pflag{g}')
        yield self.s('s_lshl_b32', sa, sI, 1)
        yield self.s('s_add_u32', sa, sa, sC)
        yield self.s('s_lshl_b32', sa, sa, 3)
        yield self.s('s_lshr_b32', sp[0], sJ, 1)
        yield self.s('s_add_u32', sa, sa, sp[0])
        yield self.s('s_mul_i32', sa, sa, OWN)
        yield self.s('s_add_u32', sa, sa, WS_PART + 4096 * g)
        if fl:
            yield ('delay', o['d_vis'])
            yield from self.poll(va, sWS, 0, 20 + 4 * g, vt, sp)
        else:
            yield ('delay', o['d_r2'] if g == 2 else o['d_r1'])
            yield ('until', 'polled0')
        yield ('set', f'polled{g}')

        def rl():
            for src in range(8):
                yield lambda src=src: e.bload('buffer_load_dwordx4', buf[src], ri, sWS, sa, flags='sc1', tag=('rl', g, src))
                yield self.s('s_add_u32', sa, sa, 9216 if src < 7 else -7 * 9216)
        yield from rl()
        yield lambda: e.wait(vm=[('rl', g, 8)])
        yield lambda: e.mfma(acc, PL, buf[8], 0)
        yield ('delay', o['d_rl'])
        for src in range(8):
            yield lambda src=src: e.wait(vm=[('rl', g, src)])
            yield lambda src=src: e.mfma(acc, PL, buf[src], acc)
        yield ('delay', 2)
        if not fl:
            def redo_r():
                for f in rl():
                    f()
                e.other('s_waitcnt vmcnt(0)')
                e.mfma(acc, PL, buf[8], 0)
                for src in range(8):
                    e.mfma(acc, PL, buf[src], acc)
            yield from self.check(lambda: e.ins(f'v_cmp_u_f32_e64 {sp}, {acc[0]}, {acc[0]}', w=[sp], r=[acc[0]]), sp, redo_r)
        for d in range(4):
            yield self.pack(acc[8 + d], acc[2 * d], acc[2 * d + 1])
        yield lambda: e.bstore('buffer_store_dwordx4', acc[8:12], ro, sOUT, sb, flags=o['ofl'], tag='out')
        yield ('set', f'red{g}')

    def build(self):
        e = self.e
        self.prologue()
        if self.dbg == 'xn':
            self.drain_until('normdone')
            self.dump([X[d] for d in range(144)])
            return self.finish()
        pr = self.o['prio']
        self.spawn('attn', self.th_attn(), pr[0])
        for g3 in range(4):
            self.spawn(f'relu{g3}', self.th_relu(g3), pr[1][g3])
        self.spawn('out', self.th_out(), 1)
        self.spawn('hst', self.th_hst(), pr[4])
        self.spawn('pst', self.th_pst(), 0)

        self.spawn('rdy', self.th_ready(), -1)

        def late_clr():
            yield ('until', self.o['clr0'])
            yield from self.clr_ops()
        self.spawn('clrs', late_clr(), -1)
        self.spawn('clr', self.th_clr(), -1)
        self.spawn('clr3', self.th_clr3(), 2)
        if self.o['pf'] & 2:
            self.spawn('pf', self.th_pf(), -1)
        else:
            self.ev.update(('pf', 'pfa'))
        if self.o['pf'] & 1:
            self.spawn('pf1', self.th_pf1(), -1)
        else:
            self.ev.add('pf1')
        self.spawn('tab2', self.th_tab2(), pr[2])
        self.ta = 0.0
        if self.o['pro_n']:
            self.drain_until(self.o['pro_n'])
            self.stepno = 0
            self.ta = self.st = 0.0
        self.stream()
        if not self.stop:
            self.stamp('end', real=True)
            self.stamp_out()
        if self.o['verbose']:
            print('events:', sorted(self.evstep.items(), key=lambda kv: kv[1])[36:], file=sys.stderr)
            print('look (stage, step, lookahead, inflight):', self.look, file=sys.stderr)
            print('steps', self.stepno, 'insts', e.ninst, 'nops', e.nops, file=sys.stderr)
        return self.finish()

    def finish(self):
        e = self.e
        e.label('L_end')
        e.other('s_endpgm')
        for f in self.slow:
            e.fence_all()
            f()
        hdr = open('cdna_kernels/' + NAME + '.s.ref').read().split('; Override')[0].rstrip('\n')
        hdr = '\n'.join(l[2:] if l.startswith('; ') else l for l in hdr.split('\n'))
        return kernel_file([dict(name=NAME + '_kernel', body=e.text(), grid=(256, 1, 1), block=(256, 1, 1),
                                 lds=LDS_BYTES, vgpr=512, sgpr=102, accum=256)], header_comment=hdr)


if __name__ == '__main__':
    import argparse
    ap = argparse.ArgumentParser()
    ap.add_argument('--dbg', default=None)
    ap.add_argument('--out', default='cdna_kernels/' + NAME + '.s')
    ap.add_argument('--opts', default='{}')
    a = ap.parse_args()
    g = Gen(dbg=a.dbg, opts=eval(a.opts))
    txt = g.build()
    open(a.out, 'w').write(txt)
    print('written', a.out, 'lines', txt.count('\n'), 'nops', g.e.nops, 'stamps', g.stamp_names, g.slow_names)
```

```python
import sys, struct
from collections import deque
from emit import *


def fh(f):
    return '0x%08x' % struct.unpack('<I', struct.pack('<f', f))[0]


L_WP, L_KVS, L_ZERO = 0, 1600, 4800
RB = 6400
RING = 122880
REND = RB + RING
L_T = REND
LDS_BYTES = L_T + 30720 + 256
assert LDS_BYTES <= 163840
HIW = 65536 - 1024

WS_FL = 0
WS_KVP = 1 << 20
WS_KVF = 3 << 20
WS_HX = 4 << 20
HXW = 21504
WS_PART = 32 << 20
OWN = 73728
WS_DUMP = 64 << 20
LOG2E = 1.4426950408889634

sX, sWQ, sW1, sW2, sWO, sOUT, sWS, sDBG, sWP = (S(24 + 4 * n, 4) for n in range(9))
sI, sJ, sW, sWg = S(60), S(61), S(62), S(63)
sQb = [S(64 + n) for n in range(9)]
sPb = sQb[0:5]
sU = sQb[5:9] + [S(99)]
s1b = [S(73 + n) for n in range(9)]
sM1, sM2, sM4 = S(82), S(83), S(84)
sMask, sLog, sRg, sR2, sC = S(85), S(86), S(87), S(88), S(89)
sPo = [S(90 + n) for n in range(3)]
sHo, sHi = S(93), S(94)
sFo = S(95)
sT0, sT1, sT2, sT3 = S(96), S(97), S(98), S(99)
sD = sT0
sOne = S(100)
sA0, sA1 = S(4), S(5)
sApair = S(6, 2)
sR0 = S(8)
sHs = [S(9), S(19), S(3), S(9)]
sHp = [S(10, 2), S(16, 2), S(22, 2), S(10, 2)]
sO0, sZ0 = S(12), S(13)
sYpair = S(14, 2)
sCnt = S(18)
sPf = S(17)
sStamp = S(20, 2)
sFp = S(101)
sZp = [S(74, 2), S(76, 2), S(78, 2)]
sZa = [S(73), S(80), S(81)]
sZb = [S(12), S(13), S(8)]

vTid, vLane = V(0), V(1)
vP1 = [V(2, 2), V(4, 2)]
vAQ = [V(6 + 2 * n, 2) for n in range(4)]
vDQ = [V(14 + n) for n in range(4)]
vP2 = [V(6, 2), V(8, 2)]
vD2 = [V(10 + n) for n in range(4)]
vDO = [V(14), V(15)]
vRi, vRo = V(16), V(17)
vD1 = [V(18 + n) for n in range(4)]
vWm, vWe, vKm, vKe, vTw, vTa, vTb, vPst, vL16, vRinv = (V(22 + n) for n in range(10))
vStm = V(0)
PL, PH = V(32, 4), V(36, 4)
Y = V(40, 144)
YB = [Y[16 * n:16 * n + 16] for n in range(9)]
W = V(184, 72)
vOne, vW4 = W[70], W[71]
PKV = [W[52 + n] for n in range(14)]
PKS = [S(0), S(1), S(3), S(9), S(19), S(10), S(11), S(16)]
X = A(0, 144)
AF = A(144, 32)
AS = A(176, 32)
HPa = A(208, 48)
HPS = [HPa[8 * n:8 * n + 8] for n in range(6)] + [AS[8 * n:8 * n + 8] for n in range(3)]
FACC = [[YB[4], YB[5], YB[6], YB[7]], [YB[1], YB[8]], [YB[2], YB[0], YB[5]]]
HS = [YB[4][0:8], YB[4][8:16], YB[6][0:8], YB[6][8:16], YB[1][0:8], YB[1][8:16], YB[2][0:8], YB[2][8:16], YB[5][0:8]]
HG = [(0, 4), (4, 6), (6, 9)]
QA = [YB[0], YB[1], YB[2], YB[3]]
GB = [YB[3][4 * n:4 * n + 4] for n in range(4)] + [YB[8][4 * n:4 * n + 4] for n in range(4)] + [YB[5][8:12], YB[5][12:16]]

B8 = ('v_add_f32_dpp', 'ds_', 'buffer_', 'global_', 'v_mfma', 'v_accvgpr', 'v_pk_', 'v_cvt_pk', 'v_fma_', 'v_max3', 'v_min3', 'v_lshl_add', 'v_add_lshl', 'v_mad', 'v_add3', 'v_bfe', 'v_mul_lo', 'v_writelane', 'v_readlane', 's_mem', 's_load')
VALU = ('valu', 'trans', 'perm', 'rdlane')
VOP3 = ('v_cvt_pk', 'v_fma_', 'v_max3', 'v_min3', 'v_accvgpr', 'v_pk_', 'v_lshl_add', 'v_add3', 'v_bfe', 'v_mul_lo', 'v_writelane')


class Th:
    def __init__(self, name, gen, prio):
        self.name, self.g, self.prio = name, gen, prio
        self.head, self.wake, self.done = None, 0, False

    def peek(self, sc, force=False):
        while True:
            if self.done:
                return None
            if sc.stepno < self.wake and not force:
                return None
            if self.head is None:
                try:
                    self.head = next(self.g)
                except StopIteration:
                    self.done = True
                    return None
            h = self.head
            if isinstance(h, tuple):
                if h[0] == 'delay':
                    self.wake = sc.stepno + h[1]
                    self.head = None
                    if force:
                        return None
                elif h[0] == 'until':
                    if h[1] not in sc.ev:
                        return None
                    self.head = None
                elif h[0] == 'set':
                    sc.ev.add(h[1])
                    sc.evstep[h[1]] = sc.stepno
                    if h[1] in sc.o['sev']:
                        sc.stamp(f'{h[1]}@{sc.stepno}')
                    self.head = None
                elif h[0] == 'prio':
                    self.prio = h[1]
                    sc.resort = True
                    self.head = None
                elif h[0] == 'spawn':
                    sc.spawn(*h[1:])
                    self.head = None
                else:
                    raise ValueError(h)
                continue
            return h


class Rec:
    def __init__(self, e):
        self.__dict__.update(e=e, q=[], glue=False, dry=False)

    def mark(self, name):
        self.q.append(name)

    def __getattr__(self, name):
        fn = getattr(self.e, name)

        def rec(*a, **k):
            f = lambda: fn(*a, **k)
            if self.glue or (name == 's' and a[0].startswith('s_cselect')):
                prev = self.q.pop()
                self.q.append(lambda: (prev(), f()))
            else:
                self.q.append(f)
        return rec


class Gen:
    def __init__(self, dbg=None, opts=None):
        self.e = Emitter()
        self.dbg = dbg
        self.o = dict(LA=7, bytes=52, rot=True, touch=1, stamps=False, map='a', nD=3, bq=7, bf=8, bg=7,
                      ilv=True, g1=(0, 1, 2), st_c=8, st_p=8, st_pn=6, st_h=(8, 8, 4), rl0=2, d_clr=12, clr3='hp0', d_clr3=10, d_r0=45, t_sl=0, rs=(0, 0), r0late=None, tord=0, tm='F', hthr=None, hgap=0, pffast=False, d_c1=8, d_cf=50, clr0='norm6', pf=3, pfe=((130, 2, 25, '1'), (190, 2, 25, 'a'), (250, 2, 25, 'bo')), pft=None, p1='sssssssss', qsh=1, pst=False, pw0=None, tlb=2, pro_0=12, pro_t=200, pfo=True, wfl='', xfl='', pfl='', pro_k=3, pro_tk=3, pro_mk=4, pro_x=2, pro_i=4, pro_j=3, pro_lag=4, pro_w=8, pro_wn=6, pro_v=2, rgm=0, pro_n='norm1', g2='00 01 02 03 10 11 12 13 20 21 22 23 L0 L1 L2 L3 U4', rs1=False, d_r1=40, rdy0='norm12', d_kvr=50, d_gl=36, d_kv2=45, d_hl=(60, 60, 45), d_rl=40, d_kv=45, d_o=45, d_r2=50, sfl='sc1', hfl='sc1', prio=(0.13, (0.125, 0.15, 0.11, 0.15), 0.1, 3, 0.12), urg=1, lfl='', ta_q=5.5, ta_d=2.1, ta_s=0.5, ta_slack=1.0, d_ack=30, d_poll=28, d_load=30, d_vis=45, ofl='', verbose=False,
                      sev=('qkv', 'acc2', 'tile0', 'tile8', 'polled0', 'red0'))
        if opts:
            self.o.update(opts)
        self.ev, self.evstep = set(), {}
        self.threads = []
        self.stepno = 0
        self.dma_q = deque()
        self.slow = []
        self.nstamp = 0
        self.nslow = 0
        self.slow_names = []
        self.stamp_names = []
        self.stop = False
        self.lastdma, self.look = {}, []
        self.build_stream()

    def build_stream(self):
        G, ST, IT = [], [], []
        nD = self.o['nD']

        def grp(size, mreg, dmas):
            G.append(dict(size=size, mreg=mreg, dmas=dmas, addr=None))
            return len(G) - 1

        pend = []
        for g3 in range(3):
            accs = FACC[g3]
            for kp in range(9):
                if g3 == 0:
                    gq = grp(16384, sM4, [(vDQ[kk], sWQ, sQb[kp], 1024 * kk) for kk in range(4)])
                    G[gq]['ta'] = self.o['ta_q']
                if g3 != 1:
                    g = grp(16384, sM4, [(vD1[c], sW1, s1b[kp], 1024 * c) for c in range(4)])
                    if g3 == 2:
                        ST.append([g])
                    elif self.o['p1'][kp] == 'i':
                        ST.append([gq, g])
                    elif self.o['p1'][kp] == 'f':
                        ST.extend([[g], [gq]])
                    else:
                        ST.extend([[gq], [g]])
                else:
                    g = grp(8192, sM2, [(vD1[c], sW1, s1b[kp], 1024 * c) for c in range(2)])
                    pend.append(g)
                    if len(pend) == 2 or kp == 8:
                        ST.append(pend)
                        pend = []
                if kp == 0 and g3 > 0:
                    G[g]['pre'] = f'd1_{g3}'
                qi, fi = [], []
                for kk in range(4):
                    ks = 4 * kp + kk
                    qi.append([])
                    fi.append([])
                    if g3 == 0:
                        for tl in (1, 3, 2, 0):
                            qi[-1].append(dict(g=gq, off=1024 * kk, pat=vAQ[tl], us=256, b=X[4 * ks:4 * ks + 4], acc=QA[tl],
                                               first=ks == 0, need=[f'norm{ks}'] if tl == 1 else [], ph='q'))
                        if ks == 35:
                            qi[-1][-1]['done'] = ['qkv']
                    for t in range(len(accs)):
                        off = ((t >> 1) * 2 + (kk >> 1)) * 4096 + (kk & 1) * 2048 if g3 != 1 else kk * 2048
                        it = dict(g=g, off=off, pat=vP1[t & 1], us=512, b=X[4 * ks:4 * ks + 4],
                                  acc=accs[t], first=ks == 0, need=[], ph='q' if g3 == 0 else 'f')
                        if ks == 0 and t == 0:
                            it['need'] = {0: [], 1: ['clr', 'clr2', 'pf', 'kxread'], 2: ['hr1', 'qaread']}[g3]
                        if g3 == 0 and t == 0:
                            it['need'] = [f'norm{ks}']
                        fi[-1].append(it)
                    if ks == 35:
                        fi[-1][-1]['done'] = [f'acc{g3}']
                if g3 == 0 and self.o['p1'][kp] == 'i':
                    for kk in range(4):
                        IT.extend(qi[kk] + fi[kk])
                elif g3 == 0 and self.o['p1'][kp] == 'f':
                    IT.extend(sum(fi, []) + sum(qi, []))
                else:
                    IT.extend(sum(qi, []) + sum(fi, []))
        assert not pend
        self.gacc = [X[16 * n:16 * n + 16] for n in range(8)] + [YB[8]]
        self.OF, self.OP = YB[0][0:12], YB[5][8:16]
        started = set()

        def tiles(U):
            return [2 * U, 2 * U + 1] if U < 4 else [8]

        def kitems(g, U, blocks, needs):
            for (off, b, pats, us, nd) in blocks:
                for t, n in enumerate(tiles(U)):
                    it = dict(g=g, off=off, pat=pats[t], us=us, b=b, acc=self.gacc[n], first=n not in started,
                              need=list(nd) if t == 0 else [], ph='g')
                    if it['first']:
                        started.add(n)
                        if n == 8:
                            it['need'].append('xlow')
                    IT.append(it)

        hgrp = {0: 0, 1: 0, 2: 1, 3: 2, 4: 2}
        hslot = {0: 0, 1: 2, 2: 4, 3: 6, 4: 8}

        def w2grp(U, gi):
            nt = 2 if gi < 4 else 1
            g = grp(8192 * nt, sM4 if nt == 2 else sM2, [(vD2[c], sW2, sD, 1024 * (c & 1)) for c in range(2 * nt)])
            G[g]['m0b'] = 2
            G[g]['sadd'] = (sPb[U], sU[gi])
            bl = []
            for w in range(4):
                for t in range(nt):
                    own = gi < 2 or (gi == 4 and w < 2)
                    hu = 4 if gi == 4 else 2 * (gi & 1) + (w >> 1)
                    sl = hslot[hu] + (t if (own or gi == 4) else t ^ 1)
                    src = HS[sl] if own else HPS[sl]
                    o = 4 * (w & 1)
                    nd = [('hf' if own else 'hp') + str(hgrp[hu])] if (w & 1) == 0 and t == 0 else []
                    bl.append((w * 2048 * nt + t * 2048, src[o:o + 4], vP2, 1024, nd))
            kitems(g, U, bl, None)
            return g

        def wogrp(U):
            g = grp(8192, sM2, [(vDO[c], sWO, sPb[U], 1024 * c) for c in range(2)])
            bl = []
            for w in range(4):
                src = self.OF if w < 2 else self.OP
                bl.append((w * 2048, src[4 * (w & 1):4 * (w & 1) + 4], vP1, 512, ['of'] if w == 0 else ['op'] if w == 2 else []))
            kitems(g, U, bl, None)
            for n in tiles(U):
                IT.append(dict(g=None, wox=n, b=self.OF[8:12], acc=self.gacc[n], first=False, need=['wox'], ph='g', done=[f'tile{n}']))
            return g

        for tok in self.o['g2'].split():
            U = int(tok[1])
            if tok[0] in 'EU':
                for gi in (0, 2, 1):
                    ST.append([w2grp(U, gi)])
            if tok[0] in 'LU':
                ST.append([w2grp(U, 3)])
                ST.append([w2grp(U, 4), wogrp(U)])
            if tok[0] in '0123':
                ST.append([w2grp(U, int(tok[0]))])
            if tok[0] == 'W':
                ST.append([w2grp(U, 4), wogrp(U)])
        self.G, self.ST, self.IT = G, ST, IT
        for s, gs in enumerate(ST):
            for g in gs:
                G[g]['stage'] = s
        self.synced = -1
        self.next_stage = 0
        self.rhead = RB
        self.live = deque()
        self.rlimit = RB + 65536
        self.stage_gate = {}
        first_g2 = next(s for s, gs in enumerate(ST) if G[gs[0]]['dmas'][0][1] is sW2)
        self.stage_gate[first_g2] = 'tab2'

    def try_alloc_stage(self):
        s = self.next_stage
        if s >= len(self.ST):
            return False
        if s in self.stage_gate and self.stage_gate[s] not in self.ev:
            return False
        head = self.rhead
        ranges = []
        for g in self.ST[s]:
            sz = self.G[g]['size']
            st = head if head + sz <= self.rlimit else RB
            for (_, a, b) in list(self.live) + ranges:
                if st < b and a < st + sz:
                    return False
            ranges.append((s, st, st + sz))
            head = st + sz
        for g, r in zip(self.ST[s], ranges):
            self.G[g]['addr'] = r[1]
            self.live.append(r)
            self.queue_group(g)
        self.rhead = head
        self.next_stage += 1
        return True

    def queue_group(self, g):
        e = self.e
        gr = self.G[g]
        if gr.get('pre'):
            self.dma_q.extend(self.d1_update(int(gr['pre'][-1])))
        self.dma_q.append(lambda: e.s('s_add_u32', 'm0', gr['mreg'], gr['addr']))
        if gr.get('sadd'):
            self.dma_q.append(lambda: e.s('s_add_u32', sD, *gr['sadd']))
        for n_, (voff, srd, soff, imm) in enumerate(gr['dmas']):
            if n_ and n_ == gr.get('m0b'):
                self.dma_q.append(lambda: e.s('s_add_u32', 'm0', gr['mreg'], gr['addr'] + 2048))
            f = lambda voff=voff, srd=srd, soff=soff, imm=imm: e.dma(voff, srd, soff, tag=('st', gr['stage']), off=imm, flags=self.o['wfl'])
            f.ta = gr.get('ta', self.o['ta_d'])
            f.stage = gr['stage']
            self.dma_q.append(f)

    def d1_update(self, g3):
        e = self.e
        if g3 == 1:
            return [lambda c=c: e.v('v_add_u32', vD1[c], sT1, vD1[c]) for c in range(2)]
        return [lambda: e.s('s_add_u32', sT1, sT1, sT2)] + \
            [lambda c=c: e.v('v_add_u32', vD1[c], sT2 if c < 2 else sT1, vD1[c]) for c in range(4)]

    def fill(self):
        while self.try_alloc_stage():
            pass

    def flush_dma(self):
        while self.dma_q:
            self.dma_q.popleft()()

    def sync(self, s):
        e = self.e
        assert s == self.synced + 1
        if self.next_stage <= s:
            g = self.stage_gate.get(self.next_stage)
            if g:
                self.drain_until(g)
            self.fill()
        assert self.next_stage > s, ('stage not allocated', s)
        if not any(t == ('st', s) for t in e.vmq) or self.dma_q:
            need = sum(len(self.G[g]['dmas']) for g in self.ST[s])
            while self.dma_q and self.issued.get(s, 0) < need:
                self.pop_dma()
        self.look.append((s, self.stepno, self.stepno - self.lastdma[s], len(e.vmq)))
        if s >= self.o.get('novm', 999):
            e.vmq = [t if t != ('st', s) else 'x' for t in e.vmq]
        else:
            e.wait(vm=[('st', s)])
        if s < self.o.get('nobar', 999):
            e.barrier()
        self.synced = s
        self.ev.add(f'sync{s}')
        while self.live and self.live[0][0] <= s - 2:
            self.live.popleft()
        self.fill()

    issued = None
    resort = False

    def pop_dma(self):
        e = self.e
        n0 = len(e.vmq)
        f = self.dma_q.popleft()
        f()
        if len(e.vmq) > n0:
            s = e.vmq[-1][1]
            self.issued[s] = self.issued.get(s, 0) + 1
            self.lastdma[s] = self.stepno
            self.ta_use(getattr(f, 'ta', self.o['ta_d']) * (len(e.vmq) - n0))

    ta = 0.0
    st = 0.0

    def ta_use(self, c):
        self.ta = max(self.ta, self.stepno) + c
        if self.thr:
            self.thr[1] -= 1

    def ta_ok(self):
        if self.thr:
            if self.stepno >= self.thr[0]:
                self.thr = None
            elif self.thr[1] <= 0:
                return False
        return self.ta <= self.stepno + self.o['ta_slack']

    def ta_cost(self, pr):
        c = 0
        for cls, st, txt in pr:
            if cls in ('vmem', 'dma'):
                c += self.o['ta_d'] if 'x4' in txt else self.o['ta_d'] / 2 if 'x2' in txt else self.o['ta_s']
        return c

    def spawn(self, name, gen, prio):
        self.threads.append(Th(name, gen, prio))
        self.threads.sort(key=lambda t: t.prio)

    @staticmethod
    def size(txt):
        op = txt.split()[0]
        if op.startswith(B8) or '_e64' in op:
            return 8
        for a in txt.replace(',', ' ').split()[1:]:
            if a.startswith('0x') or (a.lstrip('-').isdigit() and not -16 <= int(a) <= 64):
                return 8 if not op.startswith(('s_waitcnt', 's_nop', 's_sleep')) else 4
        return 4

    @staticmethod
    def cost(pr):
        return sum(2 if cls in ('trans', 'perm') else 1 for cls, st, txt in pr)

    def nbytes(self, pr):
        return sum(self.size(txt) for cls, st, txt in pr)

    def pick(self, kinds, allow_stall=False, force=False, fit=None):
        if self.resort:
            self.threads.sort(key=lambda t: t.prio)
            self.resort = False
        ths = list(self.threads)
        if kinds == ('vm',):
            ths.sort(key=lambda t: 0 if t.name == 'attn' else 1)
        for th in ths:
            while True:
                h = th.peek(self, force)
                if h is None:
                    break
                pr = self.e.probe(h)
                if not pr:
                    h()
                    th.head = None
                    continue
                cls = pr[0][0]
                k = 'mfma' if cls == 'mfma' else 'vm' if any(p[0] in ('vmem', 'dma') and 'dwordx' in p[2] for p in pr) else 'mem' if any(p[0] in ('ds', 'vmem') for p in pr) else \
                    'valu' if cls in VALU else 'sal'
                if getattr(h, 'paced', False) and self.st > self.stepno:
                    break
                if k in kinds and (allow_stall or pr[0][1] <= 0) and (fit is None or fit(pr)):
                    return th, h, pr
                break
        return None

    def run(self, sel):
        th, h, pr = sel
        if getattr(h, 'data', False) and self.o.get('skip'):
            th.head = None
            return self.cost(pr)
        h()
        th.head = None
        c = self.ta_cost(pr)
        if c:
            self.ta_use(c)
        ns = sum(1 for p in pr if p[2].startswith('buffer_store_dwordx4'))
        if ns:
            self.st = max(self.st, self.stepno) + ns * getattr(h, 'stc', self.o['st_c'])
        return self.cost(pr)

    def dma_head(self):
        for n, f in enumerate(self.dma_q):
            if hasattr(f, 'stage'):
                return f.stage <= self.synced + self.o.get('urg', 2), n
        return False, len(self.dma_q)

    def windows(self, n0, budget):
        e = self.e
        bmax = self.o['bytes'] + 8 * (budget - 7)

        def state():
            ls = [l.strip() for l in e.lines[n0:] if not l.endswith(':') and not l.strip().startswith(';')]
            return (sum(2 if l.startswith(('v_exp', 'v_rcp', 'v_rsq', 'v_sqrt', 'v_permlane')) else 1 for l in ls),
                    sum(self.size(l) for l in ls))

        def fit(pr):
            u, b = state()
            c = self.cost(pr)
            return (u + c <= (budget if pr[-1][0] in VALU else budget - 1) and b + self.nbytes(pr) <= bmax) or (u <= 3 and c > 2)

        k = 0
        while k < 2:
            if self.dma_q and not hasattr(self.dma_q[0], 'stage') and not hasattr(self.dma_q[0], 'heavy'):
                self.pop_dma()
                k += 1
                continue
            if not self.ta_ok():
                break
            urgent = self.dma_q and self.dma_head()[0]
            sel = None if urgent else self.pick(('vm',), fit=fit)
            if sel:
                self.run(sel)
            elif self.dma_q:
                if e.probe(self.dma_q[0])[0][1] > 0:
                    sel = self.pick(('sal', 'mem'), fit=fit)
                    if sel:
                        self.run(sel)
                    else:
                        break
                self.pop_dma()
            else:
                break
            k += 1
        k = 0
        while k < 2:
            sel = self.pick(('mem',), fit=fit)
            if not sel:
                break
            self.run(sel)
            k += 1
        while True:
            sel = self.pick(('valu', 'sal'), fit=fit)
            if not sel:
                break
            self.run(sel)

    def drain_until(self, key):
        start = self.e.ninst
        acc = 0.0
        while (key not in self.ev) if key else any(not t.done for t in self.threads):
            if self.stop:
                return
            while acc >= 8:
                acc -= 8
                self.stepno += 1
            if self.dma_q and (self.ta_ok() or not hasattr(self.dma_q[0], 'stage')):
                self.pop_dma()
                acc += 1
                continue
            kinds = ('mfma', 'vm', 'mem', 'valu', 'sal') if self.ta_ok() else ('mfma', 'mem', 'valu', 'sal')
            sel = self.pick(kinds) or self.pick(kinds, allow_stall=True)
            if sel:
                acc += max(sel[2][0][1], 0)
                acc += self.run(sel)
                continue
            if not self.ta_ok() and (self.dma_q or self.pick(('vm',), allow_stall=True)):
                self.stepno += 1
                continue
            if key and key in self.ev:
                break
            if self.st > self.stepno and any(getattr(t.head, 'paced', False) for t in self.threads if not t.done):
                self.stepno += 1
                continue
            sleepers = [t for t in self.threads if not t.done and t.wake > self.stepno]
            if sleepers:
                self.stepno = min(t.wake for t in sleepers)
                continue
            if all(t.done for t in self.threads) and not key:
                break
            raise RuntimeError(f'deadlock waiting for {key}: ' + str([(t.name, t.head) for t in self.threads if not t.done]))
        if self.o['verbose'] and self.e.ninst - start > 8:
            print(f'drain for {key} at step {self.stepno}: {self.e.ninst - start} instrs', file=sys.stderr)

    def reads(self, idx):
        e = self.e
        it = self.IT[idx]
        fr = AF[4 * (idx % 8):4 * (idx % 8) + 4]
        if it['g'] is None:
            if 'wox' not in self.ev:
                self.drain_until('wox')
            e.ds('ds_read_b64_tr_b16', fr[0:2], self.vWX, off=64 * it['wox'], tag=('fr', idx))
            return 1
        gr = self.G[it['g']]
        if gr['stage'] > self.synced:
            self.sync(gr['stage'])
        a = gr['addr'] + it['off']
        pat = it['pat'][0]
        if a + it['us'] > 65535:
            pat, a = it['pat'][1], a - HIW
        e.ds('ds_read_b64_tr_b16', fr[0:2], pat, off=a, tag=('fr', idx))
        e.ds('ds_read_b64_tr_b16', fr[2:4], pat, off=a + it['us'], tag=('fr', idx))
        return 2

    def stream(self):
        e = self.e
        LA = self.o['LA']
        IT = self.IT
        n = len(IT)
        for idx in range(LA):
            self.reads(idx)
        m = 0
        while m < n and not self.stop:
            it = IT[m]
            ev_ = self.o.get('every')
            if ev_ and ev_[0] <= self.stepno < ev_[1] and self.stepno >= self.next_ev:
                self.stamp(str(self.stepno))
                self.next_ev = self.stepno + ev_[2]
            budget = self.o[{'q': 'bq', 'f': 'bf', 'g': 'bg'}[it['ph']]]
            sel = self.pick(('mfma',))
            if sel:
                self.run(sel)
                self.windows(len(e.lines) - 1, budget)
                self.stepno += 1
                continue
            for k in it['need']:
                if k not in self.ev:
                    self.drain_until(k)
            if self.stop:
                break
            e.wait(lg=[('fr', m)])
            fr = AF[4 * (m % 8):4 * (m % 8) + 4]
            e.mfma(it['acc'], fr, it['b'], 0 if it['first'] else it['acc'])
            n0 = len(e.lines) - 1
            for k in it.get('done', ()):
                self.ev.add(k)
                self.evstep[k] = self.stepno
                if k in self.o['sev']:
                    self.stamp(f'{k}@{self.stepno}')
            if m + LA < n:
                self.reads(m + LA)
            if m % 2 == 1:
                e.wait(lg=[('fr', m + 1), ('fr', m + 2)])
            self.windows(n0, budget)
            self.stepno += 1
            m += 1
        self.drain_until(None)

    def dump(self, regs):
        e = self.e
        e.wait(vm='all', lg='all')
        e.fence_all()
        t0, t1 = V(0), V(1)
        e.v('v_lshlrev_b32', t0, 2, vTid)
        e.s('s_mul_i32', sT0, sWg, len(regs) * 1024)
        e.s('s_add_u32', sT0, sT0, WS_DUMP)
        for r in regs:
            if r.k == 'a':
                e.v('v_accvgpr_read_b32', t1, r)
                r = t1
            e.bstore('buffer_store_dword', r, t0, sWS, sT0)
            e.s('s_add_u32', sT0, sT0, 1024)
        e.wait(vm='all')
        e.other('s_endpgm')
        self.stop = True

    def stamp(self, name, real=False):
        if not self.o['stamps'] or self.e.dry or self.nstamp >= 47 and not real:
            return
        e = self.e
        if real or self.e.ninst - self.last_stamp < 24:
            e.wait(lg='all')
            e.other('s_waitcnt lgkmcnt(0)')
        self.last_stamp = self.e.ninst
        vStm = self.vs
        if self.nstamp > 1:
            e.ins(f'v_writelane_b32 {vStm}, {sStamp[0]}, {self.nstamp - 1}', w=[vStm], r=[vStm])
        e.other(f'{self.o.get("clk", "s_memtime")} {sStamp}', w=[sStamp])
        if real:
            e.other('s_waitcnt lgkmcnt(0)')
            e.ins(f'v_writelane_b32 {vStm}, {sStamp[0]}, {self.nstamp}', w=[vStm], r=[vStm])
            e.other(f's_memrealtime {sStamp}', w=[sStamp])
            e.other('s_waitcnt lgkmcnt(0)')
            e.ins(f'v_writelane_b32 {vStm}, {sStamp[0]}, 61', w=[vStm], r=[vStm])
        self.stamp_names.append(name)
        self.nstamp += 1

    last_stamp = -100
    vs = YB[5][0]
    next_ev = 0

    def stamp_out(self):
        if not self.o['stamps']:
            return
        e = self.e
        e.v('v_lshlrev_b32', W[0], 2, vLane)
        e.s('s_lshl_b32', sT0, S(2), 2)
        e.s('s_add_u32', sT0, sT0, sW)
        e.s('s_lshl_b32', sT0, sT0, 8)
        e.s('s_add_u32', sT0, sT0, WS_DUMP)
        e.bstore('buffer_store_dword', vStm, W[0], sWS, sT0)

    def srd(self, d, ptr, nbytes):
        e = self.e
        e.s('s_mov_b32', d[0], ptr[0])
        e.s('s_and_b32', d[1], ptr[1], '0xffff')
        e.s('s_mov_b32', d[2], nbytes)
        e.s('s_mov_b32', d[3], '0x20000')

    def mod(self, r, m, subs):
        e = self.e
        for sub in subs:
            e.s('s_cmp_ge_u32', r, sub)
            e.s('s_cselect_b32', sT3, sub, 0)
            e.s('s_sub_u32', r, r, sT3)

    def inc9(self, r, m=9):
        e = self.e
        e.s('s_add_u32', r, r, 1)
        e.s('s_cmp_eq_u32', r, m)
        e.s('s_cselect_b32', r, 0, r)

    def prologue(self):
        e = self.e
        o = self.o
        t = [W[n] for n in range(72)]
        junk = t[67]
        e.s('s_cmp_ge_u32', S(2), 256)
        e.other('s_cbranch_scc1 L_end')
        e.other('s_load_dwordx16 s[4:19], s[0:1], 0')
        e.other('s_load_dwordx4 s[20:23], s[0:1], 64')
        if o['stamps']:
            e.other(f'{o.get("clk", "s_memtime")} {S(64, 2)}', w=[S(64, 2)])
            e.other(f's_memrealtime {S(66, 2)}', w=[S(66, 2)])
            self.stamp_names.append('start')
            self.nstamp = 1
        if o['touch']:
            pc = S(96, 2)
            e.other(f's_getpc_b64 {pc}', w=[pc])
            e.label('L_pc')
            if o['touch'] == 2:
                e.v('v_lshlrev_b32', t[0], 7, vTid)
                for rnd in range(2):
                    e.ins(f'v_min_u32 {t[1]}, L_end-L_pc, {t[0]}', w=[t[1]], r=[t[0]])
                    e.gload('global_load_dword', junk, t[1], pc, tag='pf')
                    if rnd == 0:
                        e.v('v_add_u32', t[0], 32768, t[0])
            else:
                e.s('s_bfe_u32', sT2, S(2), '0x30003')
                e.v('v_lshrrev_b32', t[0], 2, vTid)
                e.v('v_lshl_add_u32', t[0], sT2, 6, t[0])
                e.v('v_lshlrev_b32', t[0], 7, t[0])
                e.ins(f'v_min_u32 {t[1]}, L_end-L_pc, {t[0]}', w=[t[1]], r=[t[0]])
                e.gload('global_load_dword', junk, t[1], pc, tag='pf')
        e.v('v_and_b32', vLane, 63, vTid)
        e.v('v_lshrrev_b32', t[0], 6, vTid)
        e.v('v_readfirstlane_b32', sW, t[0])
        lni = {'a': 3, 'b': 2, 'c': 1}[o['map']]
        xcd, slot = sRg, sR2
        e.s('s_and_b32', xcd, S(2), 7)
        e.s('s_lshr_b32', slot, S(2), 3)
        e.s('s_and_b32', sT0, xcd, (16 >> lni) - 1)
        e.s('s_lshl_b32', sT0, sT0, lni)
        e.s('s_and_b32', sT1, slot, (1 << lni) - 1)
        e.s('s_add_u32', sI, sT0, sT1)
        e.s('s_lshr_b32', sT0, xcd, 4 - lni)
        e.s('s_lshl_b32', sT0, sT0, 5 - lni)
        e.s('s_lshr_b32', sT2, slot, lni)
        e.s('s_add_u32', sJ, sT0, sT2)
        e.s('s_lshl_b32', sT1, sT1, 3 - lni)
        if lni != 3:
            e.s('s_lshr_b32', sT0, sI, lni)
            e.s('s_add_u32', sT1, sT1, sT0)
        else:
            e.s('s_lshl_b32', sT2, sT2, 1)
        rho, ph = sLog, sC
        e.s('s_add_u32', rho, sT1, sT2)
        e.s('s_mov_b32', ph, sT1)
        self.mod(rho, 9, (18, 9, 9) if lni != 3 else (9,))
        if lni != 3:
            self.mod(ph, 9, (9,))
        if not o['rot']:
            e.s('s_mov_b32', rho, 0)
            e.s('s_mov_b32', ph, 0)
        vDX = [t[40 + n] for n in range(4)]
        r8, p8 = t[5], t[6]
        e.v('v_lshrrev_b32', r8, 3, vLane)
        e.v('v_and_b32', p8, 7, vLane)
        e.v('v_xor_b32', t[7], p8, r8)
        e.v('v_mul_u32_u24', vDX[0], 1152, r8)
        e.v('v_lshl_add_u32', vDX[0], t[7], 4, vDX[0])
        for c in range(1, 4):
            e.v('v_add_u32', vDX[c], c * (8 * 1152 - 1024), vDX[0])
        xcur, xbeg, xend, xs2 = sHo, sHi, sPo[0], sPo[1]
        e.s('s_lshl_b32', xbeg, sI, 2)
        e.s('s_add_u32', xbeg, xbeg, sW)
        e.s('s_mul_i32', xbeg, xbeg, 32 * 1152)
        e.s('s_add_u32', xend, xbeg, 1152)
        e.s('s_lshl_b32', xcur, rho, 7)
        e.s('s_add_u32', xcur, xcur, xbeg)
        e.s('s_lshl_b32', sM4, sW, 12)
        e.s('s_mul_i32', xs2, sW, 20480)

        T = Rec(e)
        self.e = T
        self.tables(t, r8, p8, rho, ph, xs2)
        self.e = e
        fq = T.q

        def fill(n=1 << 30, upto=None):
            while fq and n > 0:
                f = fq[0]
                if isinstance(f, str):
                    if f == 'xend' and not xdone[0]:
                        return
                    fq.pop(0)
                    if f == upto:
                        return
                    continue
                fq.pop(0)()
                n -= 1

        def need(mark):
            if mark in fq:
                fill(upto=mark)
        xdone = [False]
        self.need = need
        fill(o['pro_0'], upto='k')
        e.other('s_waitcnt lgkmcnt(0)')
        self.srd(sX, S(4, 2), 2359296)
        xr, xr2 = [t[44 + n] for n in range(4)], [t[48 + n] for n in range(4)]
        G, SM, A16 = YB[6], YB[7][0:4], YB[7][4:8]
        mq = deque()

        def consume(kp):
            need('xr')
            e.wait(vm=[('x', kp)])
            if o['pst'] and kp in (0, 2, 4, 6, 8):
                self.stamp(f'x{kp}')
            for kk in range(4):
                ks = 4 * kp + kk
                e.ds('ds_read_b128', X[4 * ks:4 * ks + 4], (xr if kp < 4 else xr2)[kk], off=kp * 16384 if kp < 4 else (kp - 4) * 4096, tag=('xr', ks))

                def mm(ks=ks):
                    e.wait(lg=[('xr', ks)])
                    e.mfma(G, X[4 * ks:4 * ks + 4], X[4 * ks:4 * ks + 4], G if ks else 0)
                    fill(o['pro_i'])
                    e.mfma16(SM, A16, X[4 * ks:4 * ks + 4], SM if ks else 0)
                    fill(o['pro_i'] // 2)
                mq.append(mm)

        def wdma(n, keep=0):
            for _ in range(n):
                n0 = len(e.vmq)
                while self.dma_q and len(e.vmq) == n0:
                    if e.probe(self.dma_q[0])[0][1] > 0:
                        fill(1)
                    self.pop_dma()
                if len(mq) > keep:
                    mq.popleft()()

        def bar1(ncons):
            need('w')
            e.wait(lg=[('xr', 4 * min(ncons, 4) - 1)])
            e.barrier()
            self.rlimit = RB + 16384 * min(ncons, 4)
            self.fill()

        self.issued = {}
        lag = o['pro_lag']
        for kp in range(9):
            if kp == o['pro_k']:
                need('mem')
                fill(o['pro_t'])
                need('xr')
                if o['pst']:
                    self.stamp('tabs')
            if kp >= lag:
                consume(kp - lag)
            if kp < 4:
                e.s('s_add_u32', 'm0', sM4, RB + kp * 16384)
            else:
                e.s('s_add_u32', 'm0', xs2, RB + 65536 + (kp - 4) * 4096)
            if kp:
                e.s('s_add_u32', xcur, xcur, 128)
                e.s('s_cmp_eq_u32', xcur, xend)
                e.s('s_cselect_b32', xcur, xbeg, xcur)
            else:
                fill(1)
            for c in range(4):
                e.dma(vDX[c], sX, xcur, tag=('x', kp), off=1024 * c, flags=o['xfl'])
                if kp < lag:
                    fill(o['pro_j'])
                if len(mq) > (4 if c == 0 else 0):
                    mq.popleft()()
            for f in self.xtra.get(kp, ()):
                need('mem')
                f()
            if kp == o['pro_w'] and kp < 8:
                bar1(kp - lag + 1)
                wdma(o['pro_wn'])
        xdone[0] = True
        if o['pst']:
            self.stamp('xiss')
        for kp in range(9 - lag, 9):
            consume(kp)
            if mq and len(mq) > 4:
                mq.popleft()()
            if kp == 9 - lag and o['pro_w'] >= 8:
                bar1(kp)
            if kp == 8:
                need('wpd')
                e.wait(vm='wp')
                e.ds('ds_write_b32', t[31], t[10], off=L_WP, tag='wpw')
                e.ds('ds_write_b32', t[32], t[11], off=L_WP, tag='wpw')
            wdma(o['pro_v'], 1)
            while len(mq) > 1:
                mq.popleft()()
        while mq:
            mq.popleft()()
        fill()
        e.wait(lg='all')
        e.barrier()
        if o['pst']:
            self.stamp('xbar')
        self.rlimit = REND
        self.fill()
        e.s('s_or_b32', sT0, sJ, sW)
        e.s('s_cmp_lg_u32', sT0, 0)
        e.other('s_cbranch_scc1 L_nordy')
        sl0 = e.slot
        e.ins('s_mov_b64 exec, 1', w=['exec'], cls='salu')
        e.ins(f'buffer_store_byte {vOne}, {t[12]}, {sDBG}, {sI} offen sc1', r=[vOne, t[12], sDBG, sI], cls='vmem')
        e.ins('s_mov_b64 exec, -1', w=['exec'], cls='salu')
        e.label('L_nordy')
        e.slot = sl0
        wdma(o['pro_x'])
        mean, var, t0, t1 = YB[7][8], YB[7][9], YB[7][10], YB[7][11]
        inv = fh(1.0 / 576.0)
        e.v('v_mul_f32', mean, inv, SM[0])
        for d in range(8):
            e.v('v_cndmask_b32', G[d], G[2 * d], G[2 * d + 1])
        e.v('v_cvt_pk_bf16_f32', W[0], 0, f'-{mean}', extra_r=[mean])
        e.ins('s_mov_b32 vcc_lo, 0xffff0000', w=['vcc'], cls='salu')
        e.ins('s_mov_b32 vcc_hi, 0xffff0000', w=['vcc'], cls='salu')
        for d in range(1, 16):
            e.v('v_mov_b32', W[d], W[0])
        self.spawn('norm', self.th_norm(), 0)

        def nm():
            self.run(self.pick(('mfma',), allow_stall=True))
            wdma(1)

        def sel(d, a_, b_, m):
            e.ins(f'v_cndmask_b32_e64 {d}, {a_}, {b_}, {m}', w=[d], r=[a_, b_, m])
        for d in range(4):
            sel(G[d], G[2 * d], G[2 * d + 1], sApair)
            if d == 1:
                nm()
        e.ins(f's_mov_b32 {sApair[0]}, 0xf0f0f0f0', w=[sApair[0]], cls='salu')
        e.ins(f's_mov_b32 {sApair[1]}, 0xf0f0f0f0', w=[sApair[1]], cls='salu')
        for d in range(2):
            sel(G[d], G[2 * d], G[2 * d + 1], sYpair)
        e.v('v_cndmask_b32', var, G[0], G[1])
        e.v('v_mov_b32', t0, var)
        nm()
        e.v('v_permlane32_swap_b32', var, t0)
        sel(var, var, t0, sApair)
        e.v('v_mul_f32', var, inv, var)
        e.v('v_fma_f32', var, f'-{mean}', mean, var, extra_r=[mean])
        e.v('v_max_f32', var, 0, var)
        e.v('v_cvt_pk_bf16_f32', t1, 0, var)
        nm()
        e.v('v_add_f32', t1, fh(1e-5), t1)
        e.v('v_cvt_pk_bf16_f32', t1, 0, t1)
        e.v('v_sqrt_f32', t1, t1)
        s2 = [(pat, b0, k, off) for (pat, b0) in ((vWm, 0), (vWe, 16)) for k, off in ((0, 0), (2, 160), (4, 320), (6, 480), (10, 640))]
        for pat, b0, k, off in s2[:2]:
            e.ds('ds_read_b64_tr_b16', AS[b0 + k:b0 + k + 2], pat, off=off, tag='s2')
        e.v('v_cvt_pk_bf16_f32', t1, 0, t1)
        nm()
        e.v('v_rcp_f32', vRinv, t1)
        for pat, b0, k, off in s2[2:4]:
            e.ds('ds_read_b64_tr_b16', AS[b0 + k:b0 + k + 2], pat, off=off, tag='s2')
        e.v('v_fma_f32', t0, f'-{t1}', vRinv, 1.0, extra_r=[t1])
        e.v('v_fma_f32', vRinv, t0, vRinv, vRinv)
        for pat, b0, k, off in s2[4:]:
            e.ds('ds_read_b64_tr_b16', AS[b0 + k:b0 + k + 2], pat, off=off, tag='s2')
        if o['stamps']:
            e.v('v_mov_b32', vStm, self.vs)
            self.vs = vStm
        self.stamp('x')

    def tables(self, t, r8, p8, rho, ph, xs2):
        e = self.e
        o = self.o
        junk = t[67]
        e.s('s_lshl_b32', sWg, sI, 4)
        e.s('s_add_u32', sWg, sWg, sJ)
        e.s('s_mul_i32', sT0, sJ, 1296)
        e.v('v_lshl_add_u32', t[9], vTid, 2, sT0)
        z = W[12:16]
        for k in range(4):
            e.v('v_mov_b32', z[k], 0)
        e.s('s_lshl_b32', sFo, sWg, 8)
        e.v('v_lshlrev_b32', t[16], 4, vTid)
        e.v('v_lshlrev_b32', t[66], 20, vLane)
        e.ds('ds_write_b128', t[16], z, off=0, tag='z')
        e.v('v_min_u32', t[17], 6400 - 4096 - 16, t[16])
        e.ds('ds_write_b128', t[17], z, off=4096, tag='z')
        e.mark('k')
        self.srd(sWQ, S(6, 2), 1990656)
        self.srd(sW1, S(14, 2), 5308416)
        self.srd(sWP, S(8, 2), 20736)
        self.srd(sWS, S(22, 2), 1 << 28)
        self.srd(sWO, S(10, 2), 663552)
        self.srd(sW2, S(16, 2), 5308416)
        re = e.e

        def tlbs():
            for srd_ in (sWQ, sW1, sW2, sWO)[:o['tlb']]:
                re.bload('buffer_load_dword', junk, t[66], srd_, 0, tag='pf')

        def mems():
            re.bload('buffer_load_dword', t[10], t[9], sWP, 0, tag='wp')
            re.s('s_cmp_lg_u32', sJ, 0)
            re.other('s_cbranch_scc1 L_noclr')
            sl0 = re.slot
            re.ins(f'buffer_store_dwordx4 {z}, {t[16]}, {sWS}, {sFo} offen sc1', r=[z, t[16], sWS, sFo], cls='vmem')
            re.label('L_noclr')
            re.slot = sl0
            re.bload('buffer_load_dword', t[11], t[9], sWP, 0, off=1024, tag='wp')
        self.xtra = {o['pro_tk']: [tlbs]}
        self.xtra.setdefault(o['pro_mk'], []).append(mems)
        e.mark('mem')
        self.srd(sOUT, S(18, 2), 2359296)
        self.srd(sDBG, S(20, 2), 256)
        e.s('s_mov_b32', sMask, '0xffff0000')
        e.s('s_mov_b32', sOne, '0x01010101')
        e.v('v_lshlrev_b32', vL16, 4, vLane)
        e.v('v_mov_b32', vOne, 1)
        e.v('v_lshlrev_b32', vW4, 6, sW)
        xr = [t[44 + n] for n in range(4)]
        xr2 = [t[48 + n] for n in range(4)]
        hk, tk, r_, c4, g1 = t[19], t[20], t[21], t[22], t[23]
        a, b, c_ = t[24], t[25], t[26]
        e.v('v_lshrrev_b32', hk, 5, vLane)
        e.v('v_and_b32', tk, 31, vLane)
        e.v('v_bfe_u32', r_, vLane, 2, 2)
        e.v('v_and_b32', c4, 3, vLane)
        e.v('v_bfe_u32', g1, vLane, 4, 1)
        e.v('v_xor_b32', a, p8, hk)
        e.v('v_lshlrev_b32', b, 7, tk)
        e.v('v_lshl_add_u32', a, a, 4, b)
        e.s('s_add_u32', sT0, sM4, RB)
        e.s('s_add_u32', sT1, xs2, RB + 65536)
        e.v('v_add_u32', xr[0], sT0, a)
        e.v('v_add_u32', xr2[0], sT1, a)
        for kk in range(1, 4):
            e.v('v_xor_b32', xr[kk], 32 * kk, xr[0])
            e.v('v_xor_b32', xr2[kk], 32 * kk, xr2[0])
        e.v('v_bfe_u32', a, vLane, 2, 1)
        e.v('v_mov_b32', b, '0x3f803f80')
        e.ins(f'v_cmp_eq_u32 vcc, {a}, {g1}', w=['vcc'], r=[a, g1])
        for d in range(4):
            e.v('v_cndmask_b32', YB[7][4 + d], 0, b)
        if o['stamps']:
            e.v('v_mov_b32', YB[5][0], 0)
            e.ins(f'v_writelane_b32 {YB[5][0]}, s64, 0', w=[YB[5][0]], r=[YB[5][0]])
            e.ins(f'v_writelane_b32 {YB[5][0]}, s66, 60', w=[YB[5][0]], r=[YB[5][0]])
        e.mark('xr')
        if o['pw0'] is not None:
            pq_, pw_, u0, u1 = t[33], t[34], t[35], t[36]
            e.s('s_and_b32', sT0, sI, 7)
            e.s('s_lshl_b32', sT0, sT0, 2)
            e.s('s_and_b32', sT1, sJ, 3)
            e.s('s_add_u32', sT0, sT0, sT1)
            e.s('s_lshl_b32', sT0, sT0, 2)
            e.s('s_add_u32', sT0, sT0, sW)
            e.s('s_mul_i32', sT0, sT0, 9)
            e.s('s_lshr_b32', sT0, sT0, 1)
            e.s('s_lshr_b32', sT1, sJ, 2)
            e.v('v_min_u32', u0, 44, vLane)
            e.v('v_mul_u32_u24', u1, 43, u0)
            e.v('v_lshrrev_b32', u1, 7, u1)
            e.v('v_mul_u32_u24', pq_, 1152 - 384, u1)
            e.v('v_lshl_add_u32', pq_, u0, 7, pq_)
            e.s('s_mul_i32', sT2, sT0, 3456)
            e.s('s_lshl_b32', sT3, sT1, 8)
            e.s('s_add_u32', sT2, sT2, sT3)
            e.v('v_add_u32', pq_, sT2, pq_)
            e.v('v_min_u32', u0, 39, vLane)
            e.v('v_lshrrev_b32', u1, 3, u0)
            e.v('v_mul_u32_u24', pw_, 9216, u1)
            e.v('v_bfe_u32', u1, u0, 2, 1)
            e.v('v_mad_u32_u24', pw_, u1, 1152 // 64, pw_) if False else None
            e.v('v_mul_u32_u24', u1, 1152, u1)
            e.v('v_add_u32', pw_, pw_, u1)
            e.v('v_bfe_u32', u1, u0, 1, 1)
            e.v('v_mul_u32_u24', u1, 640, u1)
            e.v('v_and_b32', u0, 1, u0)
            e.v('v_lshl_add_u32', u0, u0, 7, u1)
            e.s('s_mul_i32', sT2, sT0, 9216)
            e.s('s_mul_i32', sT3, sT1, 2304)
            e.s('s_add_u32', sT2, sT2, sT3)
            e.v('v_add3_u32', pw_, pw_, u0, sT2)
            e.mark('pw')

            def pws():
                self.need('pw')
                if 'q' in o['pw0'][1]:
                    re.bload('buffer_load_dword', junk, pq_, sWQ, 0, tag='pf')
                if '1' in o['pw0'][1]:
                    re.bload('buffer_load_dword', junk, pw_, sW1, 0, tag='pf')
            self.xtra.setdefault(o['pw0'][0], []).append(pws)
        e.s('s_mul_i32', sT1, sJ, 72)
        if o['qsh']:
            e.s('s_and_b32', sT1, sT1, -16)
        e.s('s_lshr_b32', sT2, sJ, 1)
        e.s('s_mul_i32', sT2, sT2, 1152)
        for kp in range(9):
            e.s('s_mul_i32', sQb[kp], rho, 64 * 3456)
            e.s('s_add_u32', sQb[kp], sQb[kp], sT1)
            e.s('s_mul_i32', s1b[kp], rho, 64 * 9216)
            e.s('s_add_u32', s1b[kp], s1b[kp], sT2)
            if kp < 8:
                self.inc9(rho)
        e.s('s_and_b32', sRg, ph, o['rgm'])
        e.s('s_lshr_b32', sR2, ph, 1)
        e.s('s_and_b32', sR2, sR2, 3)
        e.s('s_and_b32', sC, sJ, 1)
        e.s('s_mov_b32', sLog, fh(LOG2E))
        e.s('s_lshl_b32', sM1, sW, 10)
        e.s('s_lshl_b32', sM2, sW, 11)
        e.s('s_lshl_b32', sT0, sW, 2)
        e.v('v_subrev_u32', a, sT0, vLane)
        e.v('v_and_b32', a, 15, a)
        e.v('v_min_u32', a, 14, a)
        e.v('v_mul_u32_u24', b, 13, a)
        e.v('v_lshrrev_b32', b, 6, b)
        e.v('v_mul_u32_u24', c_, 1152 - 80, b)
        e.v('v_lshl_add_u32', a, a, 4, c_)
        e.v('v_lshrrev_b32', b, 4, vLane)
        e.v('v_mul_u32_u24', b, 4 * 3456, b)
        e.s('s_mul_i32', sT0, sW, 3456)
        e.v('v_add3_u32', vDQ[0], a, b, sT0)
        for kk in range(1, 4):
            e.v('v_add_u32', vDQ[kk], kk * (16 * 3456 - 1024), vDQ[0])
        e.v('v_xor_b32', a, sC, g1)
        e.v('v_lshlrev_b32', a, 2, a)
        e.v('v_xor_b32', a, a, p8)
        e.v('v_mul_u32_u24', b, 9216, r8)
        e.v('v_lshl_add_u32', a, a, 4, b)
        c5 = sFp
        e.s('s_mul_i32', c5, sC, 640)
        e.s('s_lshr_b32', sT0, sW, 1)
        e.s('s_lshl_b32', sT0, sT0, 7)
        e.s('s_add_u32', sT0, sT0, c5)
        e.s('s_and_b32', sT3, sW, 1)
        e.s('s_mul_i32', sT3, sT3, 32 * 9216)
        e.s('s_add_u32', sT0, sT0, sT3)
        e.v('v_add_u32', vD1[0], sT0, a)
        for c in range(1, 4):
            e.v('v_add_u32', vD1[c], c * (8 * 9216 - 1024), vD1[0])
        e.mark('w')
        e.s('s_mul_i32', sT1, sW, 16 * 9216)
        e.s('s_add_u32', sT1, sT1, c5)
        e.s('s_add_u32', sT1, sT1, 256)
        e.s('s_add_u32', sT2, c5, 384)
        e.s('s_cmp_lt_u32', sW, 2)
        e.s('s_cselect_b32', sT2, sT2, 512)
        e.s('s_add_u32', sT2, sT2, sT3)
        e.s('s_sub_u32', sT2, sT2, sT1)
        e.s('s_sub_u32', sT1, sT1, sT0)
        e.s('s_xor_b32', sFp, sFo, 256)
        sU_ = sPo[2]
        e.v('v_lshlrev_b32', a, 5, g1)
        e.v('v_lshl_add_u32', a, r_, 7, a)
        e.v('v_lshl_add_u32', a, c4, 3, a)
        e.v('v_bfe_u32', b, vLane, 3, 1)
        e.v('v_lshl_add_u32', a, b, 6, a)
        e.v('v_lshl_add_u32', vP1[0][0], hk, 10, a)
        e.v('v_xor_b32', vP1[1][0], 64, vP1[0][0])
        e.v('v_add_u32', vP1[0][1], HIW, vP1[0][0])
        e.v('v_add_u32', vP1[1][1], HIW, vP1[1][0])
        ap, hp, ch = t[27], t[28], t[29]
        e.v('v_lshrrev_b32', a, 1, c4)
        e.v('v_lshl_add_u32', ap, g1, 1, a)
        e.v('v_and_b32', hp, 1, c4)
        e.v('v_mul_u32_u24', ch, 5, hp)
        e.v('v_add_u32', ch, ch, ap)
        if o['qsh']:
            e.v('v_add_u32', ch, sC, ch)
        e.v('v_lshlrev_b32', b, 12, r_)
        e.v('v_lshl_add_u32', b, hk, 9, b)
        for tl in range(4):
            if tl < 3:
                e.v('v_lshl_add_u32', a, r_, 3, ch)
                e.v('v_add_u32', a, 10 * tl, a)
            else:
                e.v('v_min_u32', a, 2, ap)
                e.v('v_mul_u32_u24', a, 10, a)
                e.v('v_lshl_add_u32', a, r_, 3, a)
                e.v('v_add_u32', a, 4, a)
                if o['qsh']:
                    e.v('v_add_u32', a, sC, a)
            e.v('v_and_b32', a, 31, a)
            e.v('v_lshl_add_u32', vAQ[tl][0], a, 3, b)
            e.v('v_add_u32', vAQ[tl][1], HIW, vAQ[tl][0])
        e.v('v_mul_u32_u24', a, 40, r_)
        e.v('v_mov_b32', c_, L_ZERO)
        for (pm, pe, base, hs) in ((vWm, vWe, L_WP, 800), (vKm, vKe, L_KVS, 1600)):
            e.v('v_mul_u32_u24', b, hs, hk)
            e.v('v_add_u32', b, b, a)
            if base:
                e.v('v_add_u32', b, base, b)
            e.v('v_lshl_add_u32', pm, ap, 3, b)
            e.v('v_add_u32', pe, 32, b)
            e.ins(f'v_cmp_eq_u32 vcc, {hk}, {hp}', w=['vcc'], r=[hk, hp])
            e.v('v_cndmask_b32', pm, c_, pm)
            e.v('v_cndmask_b32', pe, c_, pe)
            e.ins(f'v_cmp_eq_u32 vcc, 0, {ap}', w=['vcc'], r=[ap])
            e.v('v_cndmask_b32', pe, c_, pe)
        e.s('s_mul_i32', sT0, sW, 32 * 240)
        e.s('s_add_u32', sT0, sT0, L_T)
        e.v('v_mul_u32_u24', vTw, 240, tk)
        e.v('v_mul_u32_u24', a, 120, hk)
        e.v('v_add3_u32', vTw, vTw, a, sT0)
        e.v('v_lshl_add_u32', a, hk, 3, r_)
        e.v('v_mul_u32_u24', a, 240, a)
        e.v('v_lshl_add_u32', a, g1, 5, a)
        e.v('v_lshl_add_u32', a, c4, 3, a)
        e.s('s_lshr_b32', sT0, sW, 1)
        e.s('s_mul_i32', sT0, sT0, 120)
        e.s('s_add_u32', sT0, sT0, L_T)
        e.s('s_add_u32', sU_, sT0, 80)
        e.v('v_add_u32', vTa, sU_, a)
        e.s('s_and_b32', sU_, sW, 1)
        e.s('s_mul_i32', sU_, sU_, 40)
        e.s('s_add_u32', sU_, sU_, sT0)
        e.v('v_add_u32', vTb, sU_, a)
        e.s('s_mul_i32', sT0, sW, 2 * OWN)
        e.v('v_mul_u32_u24', a, OWN, g1)
        e.v('v_and_b32', b, 15, vLane)
        e.v('v_lshl_add_u32', a, b, 4, a)
        e.v('v_lshl_add_u32', a, hk, 8, a)
        e.v('v_add_u32', vPst, sT0, a)
        e.v('v_bfe_u32', a, vLane, 2, 1)
        e.v('v_bfe_u32', b, vLane, 3, 1)
        e.v('v_bfe_u32', c_, vLane, 1, 1)
        e.v('v_lshl_add_u32', b, b, 1, c_)
        e.v('v_and_b32', c_, 1, vLane)
        e.v('v_lshlrev_b32', c_, 4, c_)
        e.v('v_mov_b32', t[30], '0x3f80')
        e.v('v_lshlrev_b32', c_, c_, t[30])
        e.ins(f'v_cmp_eq_u32 vcc, {a}, {hk}', w=['vcc'], r=[a, hk])
        e.v('v_cndmask_b32', c_, 0, c_)
        e.v('v_lshl_add_u32', b, g1, 2, b)
        for d in range(8):
            e.ins(f'v_cmp_eq_u32 vcc, {d}, {b}', w=['vcc'], r=[b])
            e.v('v_cndmask_b32', V(32 + d), 0, c_)
        for f in self.tab2_pre():
            f()
        wpd = [t[31], t[32]]
        for rnd in range(2):
            idx, row, col, dst = t[24], t[25], t[26], wpd[rnd]
            e.v('v_add_u32', idx, 256 * rnd, vTid)
            e.v('v_min_u32', idx, 323, idx)
            e.v('v_mul_u32_u24', row, 7282, idx)
            e.v('v_lshrrev_b32', row, 16, row)
            e.v('v_mul_u32_u24', col, 9, row)
            e.v('v_sub_u32', col, idx, col)
            e.v('v_add_u32', idx, 20, row)
            e.v('v_subrev_u32', dst, 18, row)
            e.ins(f'v_cmp_gt_u32 vcc, 2, {dst}', w=['vcc'], r=[dst])
            e.v('v_cndmask_b32', row, row, idx)
            e.v('v_mul_u32_u24', dst, 40, row)
            e.v('v_lshl_add_u32', dst, col, 2, dst)
        e.ins(f'v_cmp_gt_u32 vcc, 68, {vTid}', w=['vcc'], r=[vTid])
        e.v('v_mov_b32', t[24], LDS_BYTES - 16)
        e.v('v_cndmask_b32', wpd[1], t[24], wpd[1])
        e.mark('wpd')
        for zz in (8, 9, 12, 13, 24, 25, 28, 29):
            e.v('v_accvgpr_write_b32', AS[zz], 0)
        for r, v_ in (('vcc_lo', 0xaaaaaaaa), ('vcc_hi', 0xaaaaaaaa), (sApair[0], 0xcccccccc), (sApair[1], 0xcccccccc),
                      (sYpair[0], 0xff00ff00), (sYpair[1], 0xff00ff00)):
            e.ins(f's_mov_b32 {r}, {hex(v_)}', w=['vcc' if isinstance(r, str) else r], cls='salu')
        for f in self.pf_setup():
            f()
        e.mark('xend')
        e.s('s_lshl_b32', sT0, sWg, 2)
        e.s('s_add_u32', sT0, sT0, sW)
        e.s('s_mul_i32', sHo, sT0, HXW)
        e.s('s_add_u32', sHo, sHo, WS_HX)
        e.s('s_xor_b32', sT0, sT0, 4)
        e.s('s_mul_i32', sHi, sT0, HXW)
        e.s('s_add_u32', sHi, sHi, WS_HX)
        e.s('s_lshl_b32', sT0, sI, 1)
        e.s('s_add_u32', sT0, sT0, sC)
        e.s('s_mul_i32', sT0, sT0, 8 * OWN)
        e.s('s_lshr_b32', sU_, sJ, 1)
        e.s('s_mul_i32', sU_, sU_, 9216)
        e.s('s_add_u32', sT0, sT0, sU_)
        for g in range(3):
            e.s('s_add_u32', sPo[g], sT0, WS_PART + 4096 * g)
        for f in self.clr_setup():
            f()

    def pack(self, d, a, b):
        return lambda: self.e.v('v_cvt_pk_bf16_f32', d, a, b)

    def v(self, *a, **k):
        return lambda: self.e.v(*a, **k)

    def s(self, *a):
        return lambda: self.e.s(*a)

    def flag(self, idx):
        e = self.e

        def f():
            e.ins('s_mov_b64 exec, 1', w=['exec'], cls='salu')
            e.bstore('buffer_store_dword', vOne, vW4, sWS, sFo, off=4 * idx, flags='sc1', tag='fl')
            e.ins('s_mov_b64 exec, -1', w=['exec'], cls='salu')
        return f

    def data(self, gen):
        for op in gen:
            if not isinstance(op, tuple):
                try:
                    op.data = True
                except AttributeError:
                    pass
            yield op

    def th_norm(self):
        e = self.e
        C, D = W[0:16], [W[16:32], W[32:48]]
        tt = [W[48], W[49]]

        def mm(n):
            d = D[n & 1]
            yield lambda: e.mfma(d, PL, X[8 * n:8 * n + 4], C)
            yield lambda: e.mfma(d, PH, X[8 * n + 4:8 * n + 8], d)

        yield from mm(0)
        for n in range(18):
            if n + 1 < 18:
                yield from mm(n + 1)
            d = D[n & 1]
            for q in range(8):
                t = tt[q & 1]
                yield from self.data([self.pack(d[2 * q], 0, d[2 * q]),
                                      self.pack(d[2 * q + 1], 0, d[2 * q + 1]),
                                      self.v('v_mul_f32', d[2 * q], d[2 * q], vRinv),
                                      self.v('v_mul_f32', d[2 * q + 1], d[2 * q + 1], vRinv),
                                      self.pack(t, d[2 * q], d[2 * q + 1]),
                                      self.v('v_accvgpr_write_b32', X[8 * n + q], t)])
                if q == 3:
                    yield ('set', f'norm{2 * n}')
            yield ('set', f'norm{2 * n + 1}')
        yield ('set', 'normdone')

    def poll(self, vaddr, srd, soff, imm, vt, spair, expect=1, delay=None):
        e = self.e
        tag = ('poll', e.newlabel('p'))
        slow, back = e.newlabel('L_slow'), e.newlabel('L_back')
        sidx = self.nslow
        self.nslow += 1
        self.slow_names.append(self.stepno)

        def ld():
            e.bload('buffer_load_dword', vt, vaddr, srd, soff, off=imm, flags='sc1', tag=tag)

        def cmpf():
            e.ins(f'v_cmp_ne_u32_e64 {spair}, {expect}, {vt}', w=[spair], r=[vt, expect])

        def br():
            e.ins(f's_cmp_lg_u64 {spair}, 0', w=['scc'], r=[spair], cls='salu')
            e.other(f's_cbranch_scc1 {slow}')
            e.label(back)

        yield ld
        yield ('delay', self.o['d_poll'] if delay is None else delay)
        yield lambda: e.wait(vm=[tag])
        yield cmpf
        yield ('delay', 1)
        yield br

        def slowpath():
            e.label(slow)
            e.s('s_mov_b32', sCnt, 0)
            lp = e.newlabel('L_spin')
            e.label(lp)
            if self.o['stamps']:
                e.s('s_add_u32', sCnt, sCnt, 1)
                e.ins(f'v_writelane_b32 {vStm}, {sCnt}, {48 + sidx}', w=[vStm], r=[vStm, sCnt])
                e.s('s_sub_u32', sCnt, sCnt, 1)
            e.other('s_sleep 4')
            ld()
            e.other('s_waitcnt vmcnt(0)')
            e.vmq = []
            cmpf()
            e.nop(4)
            e.ins(f's_cmp_eq_u64 {spair}, 0', w=['scc'], r=[spair], cls='salu')
            e.other(f's_cbranch_scc1 {back}')
            e.s('s_add_u32', sCnt, sCnt, 1)
            e.s('s_cmp_lt_u32', sCnt, 1 << 18)
            e.other(f's_cbranch_scc1 {lp}')
            e.other(f's_branch {back}')
        self.slow.append(slowpath)

    def th_ready(self):
        va, vt = YB[8][10], YB[8][11]
        yield ('until', self.o['rdy0'])
        yield from self.poll(va, sDBG, 0, 0, vt, sYpair, expect=sOne, delay=40)
        yield ('set', 'rdy')

    def clr_setup(self):
        m1, va = YB[8][0:4], YB[8][8:10]
        a, b, c = YB[7][12], YB[7][13], YB[7][14]
        for d in range(4):
            yield self.v('v_mov_b32', m1[d], -1)
        yield self.s('s_lshl_b32', sA0, sJ, 2)
        yield self.s('s_add_u32', sA0, sA0, sW)
        yield self.s('s_lshl_b32', sA1, sA0, 15)
        yield self.s('s_add_u32', sA1, sA1, WS_KVP)
        yield self.v('v_lshlrev_b32', va[1], 2, vLane)
        yield self.v('v_and_b32', YB[8][5], 15, vLane)
        yield self.v('v_lshl_add_u32', YB[8][5], YB[8][5], 12, vW4)
        yield self.v('v_and_b32', a, 3, vLane)
        yield self.v('v_lshlrev_b32', YB[8][10], 2, a)
        yield self.v('v_lshrrev_b32', b, 3, vLane)
        yield self.v('v_mul_u32_u24', c, 2048 - 128, b)
        yield self.v('v_add_u32', YB[8][6], c, vL16)
        yield self.v('v_add_u32', YB[8][7], 16384, YB[8][6])
        yield self.v('v_lshrrev_b32', b, 2, vLane)
        yield self.v('v_lshlrev_b32', c, 7, b)
        yield self.v('v_lshl_add_u32', b, a, 4, c)
        yield self.v('v_accvgpr_write_b32', HPa[43], b)
        yield self.v('v_lshl_add_u32', b, a, 3, c)
        yield self.v('v_accvgpr_write_b32', HPa[44], b)
        yield self.s('s_lshr_b32', sA0, sW, 1)
        yield self.s('s_mul_i32', sA0, sA0, 160)
        yield self.s('s_mul_i32', sR0, sW, 720)
        yield self.s('s_add_u32', sA0, sA0, sR0)
        yield self.v('v_min_u32', b, 44, vLane)
        yield self.v('v_lshl_add_u32', b, b, 4, sA0)
        yield self.v('v_accvgpr_write_b32', HPa[46], b)
        yield self.s('s_lshl_b32', sR0, sJ, 12)
        yield self.s('s_add_u32', sA0, sA0, sR0)
        yield self.s('s_add_u32', sA0, sA0, WS_KVF)
        yield self.v('v_lshrrev_b32', b, 4, vLane)
        yield self.v('v_lshl_add_u32', c, a, 2, b)
        yield self.v('v_and_b32', b, 1, b)
        yield self.v('v_lshl_add_u32', b, a, 1, b)
        yield self.v('v_add_u32', b, 16, b)
        yield self.v('v_sub_u32', b, b, c)
        yield self.v('v_bfe_u32', a, vLane, 2, 1)
        yield self.v('v_mad_i32_i24', c, a, b, c)
        yield self.v('v_lshl_add_u32', c, c, 1, sA0)
        yield self.v('v_accvgpr_write_b32', HPa[45], c)
        yield self.s('s_mul_i32', sR0, sI, 48)
        yield self.s('s_add_u32', sA0, sA0, sR0)
        yield self.v('v_add_u32', va[0], sA0, va[1])
        yield self.v('v_and_b32', a, 31, vLane)
        yield self.v('v_lshrrev_b32', b, 5, vLane)
        yield self.v('v_mad_u32_u24', a, a, 5, b)
        for n in range(3):
            if n:
                yield self.v('v_add_u32', a, 2, a)
            yield self.v('v_mul_u32_u24', b, 43, a)
            yield self.v('v_lshrrev_b32', b, 8, b)
            yield self.v('v_mul_u32_u24', b, 2048 - 96, b)
            yield self.v('v_lshl_add_u32', b, a, 4, b)
            yield self.v('v_accvgpr_write_b32', HPa[40 + n], b)
        yield self.s('s_lshl_b32', sA0, sI, 7)
        yield self.s('s_add_u32', sA0, sA0, sA1)
        yield self.s('s_add_u32', sR0, sHo, 18432)

    def clr_ops(self):
        e = self.e
        m1, va = YB[8][0:4], YB[8][8:10]
        sfl = 'sc1'
        dl = self.o['d_clr']
        yield lambda: e.bstore('buffer_store_dwordx4', m1, YB[8][6], sWS, sA0, flags=sfl, tag='clr')
        yield ('delay', dl)
        yield lambda: e.bstore('buffer_store_dwordx4', m1, YB[8][7], sWS, sA0, flags=sfl, tag='clr')
        yield lambda: e.bstore('buffer_store_dword', m1[0], va[0], sWS, 0, flags=sfl, tag='clr')
        yield ('set', 'clrk')
        yield ('delay', dl)
        for of in (0, 1024):
            yield lambda of=of: e.bstore('buffer_store_dwordx4', m1, vL16, sWS, sR0, off=of, flags=sfl, tag='clr2')
            yield ('delay', dl)
        yield lambda: e.bstore('buffer_store_dword', m1[0], va[1], sWS, sR0, off=2048, flags=sfl, tag='clr2')
        for g, of in [(2, 0), (2, 512)] + [(g, 512 * n) for g in (1, 0) if self.o['rs'][g] for n in range(8)]:
            yield ('delay', self.o['d_clr3'])
            yield lambda of=of, g=g: e.bstore('buffer_store_dwordx4', m1, vPst, sWS, sPo[g], off=of, flags=sfl, tag='clr2')
        yield ('delay', 4)
        yield ('set', 'clr2')
        if self.o['rs'][0]:
            yield ('delay', 40)
            yield lambda: e.wait(vm='clr2')
            yield ('until', 'rdy')
            yield self.flag(5)

    def th_clr3(self):
        va, vt, sp = YB[7][0], YB[7][1], sYpair
        if self.o['tm'] == 'S':
            e = self.e
            m1 = YB[7][0:4]
            yield ('until', 'hf0')
            yield ('until', self.o['clr3'])
            for d in range(4):
                yield self.v('v_mov_b32', m1[d], -1)
            for n in range(8):
                yield lambda n=n: e.bstore('buffer_store_dwordx4', m1, vPst, sWS, sPo[1], off=512 * n, flags='sc1', tag='clr3')
                yield ('delay', self.o['d_c1'])
            yield ('set', 'clr3')
            yield ('delay', 30)
            yield lambda: e.wait(vm='clr3')
            yield self.flag(4)
            yield ('set', 'cflag')
            return
        if not self.o['rs'][0]:
            yield ('set', 'clr3')
            return
        yield ('until', 'hf0')
        yield ('until', 'clr')
        yield ('until', self.o['clr3'])
        yield self.s('s_lshl_b32', sp[0], sI, 4)
        yield self.s('s_add_u32', sp[0], sp[0], sC)
        yield self.s('s_lshl_b32', sp[0], sp[0], 2)
        yield self.s('s_lshr_b32', sp[1], sJ, 2)
        yield self.s('s_add_u32', sp[0], sp[0], sp[1])
        yield self.s('s_lshl_b32', sp[0], sp[0], 6)
        yield self.v('v_and_b32', va, 7, vLane)
        yield self.v('v_lshl_add_u32', va, va, 9, sp[0])
        yield from self.poll(va, sWS, 0, 20, vt, sp, delay=40)
        yield ('set', 'clr3')

    def pf_setup(self):
        p1, t0, t1, pa = YB[8][12], YB[8][13], YB[8][14], YB[8][15]
        s0, s1 = sT0, sPo[2]
        yield self.s('s_and_b32', s0, sI, 7)
        yield self.s('s_lshl_b32', s0, s0, 1)
        if not self.o['pffast']:
            yield self.s('s_add_u32', s0, s0, sC)
        yield self.s('s_lshl_b32', s0, s0, 2)
        yield self.s('s_add_u32', s0, s0, sW)
        yield self.s('s_lshr_b32', s1, sJ, 1)
        yield self.s('s_lshl_b32', sPf, s1, 6)
        yield self.s('s_add_u32', sPf, sPf, s0)
        yield self.s('s_mul_i32', s0, s0, 9 * 9216)
        yield self.s('s_mul_i32', s1, s1, 1152)
        yield self.s('s_add_u32', s0, s0, s1)
        yield self.v('v_min_u32', pa, 40, vLane)
        yield self.v('v_lshlrev_b32', pa, 7, pa)
        yield self.v('v_min_u32', p1, 44, vLane)
        yield self.v('v_mul_u32_u24', t0, 13, p1)
        yield self.v('v_lshrrev_b32', t0, 6, t0)
        yield self.v('v_mul_u32_u24', t1, 5, t0)
        yield self.v('v_sub_u32', p1, p1, t1)
        yield self.v('v_add_u32', t1, 1, p1)
        yield self.v('v_lshrrev_b32', t1, 2, t1)
        yield self.v('v_lshl_add_u32', p1, t1, 1, p1)
        yield self.v('v_lshlrev_b32', p1, 7, p1)
        yield self.v('v_mul_u32_u24', t0, 9216, t0)
        yield self.v('v_add3_u32', p1, p1, t0, s0)

    thr = None

    def pf_slot(self, n, ns, jobs):
        e = self.e
        fl = self.o['pfl']
        p1, pa, pj = YB[8][12], YB[8][15], HPa[47]

        def body():
            for jb in jobs:
                up = jb.isupper() or jb == '2'
                jb = jb.lower()
                if jb == '1':
                    e.bload('buffer_load_dword', pj, p1, sW1, 0, off=256, flags=fl)
                elif jb == '2':
                    e.s('s_mov_b32', sCnt, 36 * 9216)
                    e.bload('buffer_load_dword', pj, p1, sW1, sCnt, off=256, flags=fl)
                elif jb in 'ab':
                    e.s('s_mul_i32', sCnt, sPf, 81 * 128)
                    if jb == 'b' or up:
                        e.s('s_add_u32', sCnt, sCnt, (40 * (jb == 'b') + 324 * up) * 128)
                    e.bload('buffer_load_dword', pj, pa, sW2, sCnt, flags=fl)
                else:
                    e.s('s_mul_i32', sCnt, sPf, 1296)
                    if up:
                        e.s('s_add_u32', sCnt, sCnt, 4 * 1296)
                    e.ins('s_mov_b64 exec, 0x7ff', w=['exec'], cls='salu')
                    e.bload('buffer_load_dword', pj, pa, sWO, sCnt, flags=fl)
                    e.ins('s_mov_b64 exec, -1', w=['exec'], cls='salu')

        def f():
            lb = f'L_pfs{e.uid}_{n}'
            if not e.dry:
                e.uid += 1
                if self.o['pft']:
                    self.thr = [self.stepno + self.o['pft'][1], self.o['pft'][0]]
            if ns == 1 and not self.o['pffast']:
                body()
                return
            e.s('s_cmp_lg_u32', 'vcc_lo', n)
            e.other(f's_cbranch_scc1 {lb}')
            if not e.dry:
                sl0, q0 = e.slot, list(e.vmq)
                body()
                e.slot, e.vmq = sl0, q0
            e.label(lb)
        return f

    def th_pf(self):
        for (t0, ns, gap, jobs) in self.o['pfe']:
            yield ('delay', max(1, t0 - self.stepno))
            if self.o['pffast']:
                def who(ns=ns):
                    e = self.e
                    e.s('s_and_b32', 'vcc_lo', sI, ns - 1)
                    e.s('s_lshr_b32', 'vcc_hi', sJ, 3)
                    e.s('s_cmp_eq_u32', 'vcc_hi', sC)
                    e.s('s_cselect_b32', 'vcc_lo', 'vcc_lo', 63)
                yield who
            elif ns > 1:
                yield self.s('s_and_b32', 'vcc_lo', sI, ns - 1)
            for n in range(ns):
                yield self.pf_slot(n, ns, jobs)
                if n + 1 < ns:
                    yield ('delay', gap)
        yield ('set', 'pf')

    def th_clr(self):
        e = self.e
        yield ('until', 'clrk')
        yield ('delay', 40)
        yield lambda: e.wait(vm='clr')
        yield ('until', 'rdy')
        yield self.flag(0)
        yield self.s('s_lshl_b32', sYpair[0], sJ, 8)
        yield ('delay', self.o['d_kvr'])
        yield from self.poll(YB[8][5], sWS, sYpair[0], 0, YB[8][4], sApair, delay=40)
        yield ('set', 'clr')

    def check(self, cmpf, spair, redo):
        e = self.e
        slow, back = e.newlabel('L_slow'), e.newlabel('L_back')
        sidx = self.nslow
        self.nslow += 1
        self.slow_names.append(self.stepno)

        def br():
            e.ins(f's_cmp_lg_u64 {spair}, 0', w=['scc'], r=[spair], cls='salu')
            e.other(f's_cbranch_scc1 {slow}')
            e.label(back)
        yield cmpf
        yield ('delay', 1)
        yield br

        def slowpath():
            e.label(slow)
            e.s('s_mov_b32', sCnt, 0)
            lp = e.newlabel('L_spin')
            e.label(lp)
            if self.o['stamps']:
                e.s('s_add_u32', sCnt, sCnt, 1)
                e.ins(f'v_writelane_b32 {vStm}, {sCnt}, {48 + sidx}', w=[vStm], r=[vStm, sCnt])
                e.s('s_sub_u32', sCnt, sCnt, 1)
            e.other('s_sleep 2')
            e.vmq = []
            redo()
            e.vmq = []
            e.fence_all()
            cmpf()
            e.nop(4)
            e.ins(f's_cmp_eq_u64 {spair}, 0', w=['scc'], r=[spair], cls='salu')
            e.other(f's_cbranch_scc1 {back}')
            e.s('s_add_u32', sCnt, sCnt, 1)
            e.s('s_cmp_lt_u32', sCnt, 1 << 16)
            e.other(f's_cbranch_scc1 {lp}')
            e.other(f's_branch {back}')
        self.slow.append(slowpath)

    def softmax(self, *a):
        return self.data(self.softmax_(*a))

    def softmax_(self, p, em, tmp, outp, outm):
        t0, t1, mx, mn = tmp
        for k in range(18):
            yield self.pack(p[k], 0, p[k])
        yield self.v('v_max_f32', mx, p[0], p[1])
        yield self.v('v_min_f32', mn, p[0], p[1])
        for k in range(1, 9):
            yield self.v('v_max3_f32', mx, mx, p[2 * k], p[2 * k + 1])
            yield self.v('v_min3_f32', mn, mn, p[2 * k], p[2 * k + 1])
        yield self.v('v_mul_f32', mx, sLog, mx)
        yield self.v('v_mul_f32', mn, sLog, mn)
        for k in range(18):
            yield self.v('v_fma_f32', em[k], f'-{p[k]}', sLog, mn, extra_r=[p[k]])
            yield self.v('v_fma_f32', p[k], p[k], sLog, f'-{mx}', extra_r=[mx])
        for k in range(18):
            yield self.v('v_exp_f32', em[k], em[k])
            yield self.v('v_exp_f32', p[k], p[k])
        yield self.v('v_add_f32', t1, em[0], em[1])
        yield self.v('v_add_f32', t0, p[0], p[1])
        for k in range(2, 18):
            yield self.v('v_add_f32', t1, t1, em[k])
            yield self.v('v_add_f32', t0, t0, p[k])
        yield self.v('v_rcp_f32', t1, t1)
        yield self.v('v_rcp_f32', t0, t0)
        for k in range(18):
            yield self.v('v_mul_f32', em[k], em[k], t1)
        for k in range(18):
            yield self.v('v_mul_f32', p[k], p[k], t0)
        for k in range(9):
            yield self.pack(outp[k], p[2 * k], p[2 * k + 1])
        for k in range(9):
            yield self.pack(outm[k], em[2 * k], em[2 * k + 1])

    def rdpack(self, *a):
        return self.data(self.rdpack_(*a))

    def rdpack_(self, dst, a0, a1, t0, t1):
        if a0.k == 'a':
            yield self.v('v_accvgpr_read_b32', t0, a0)
            yield self.v('v_accvgpr_read_b32', t1, a1)
            a0, a1 = t0, t1
        yield self.pack(dst, a0, a1)

    def th_attn(self):
        e = self.e
        o = self.o
        Pk, Px, Pq = W[0:16], W[16:32], W[32:48]
        KF, EF, QF = W[48:56], W[56:60], W[60:70]
        r0, r1, r2, r3 = W[0], W[1], W[2], W[3]
        q, k, vv, ex = QA
        yield ('until', 'qkv')
        yield ('until', 'normdone')
        yield ('until', 'clr')
        yield ('until', 'tab2v')
        for d in range(8):
            yield from self.rdpack(KF[d], k[2 * d], k[2 * d + 1], W[32 + 2 * (d & 1)], W[33 + 2 * (d & 1)])
        for d in range(4):
            yield from self.rdpack(EF[d], ex[2 * d], ex[2 * d + 1], W[32 + 2 * (d & 1)], W[33 + 2 * (d & 1)])
        VV = QF
        yield from self.rdpack(VV[8], ex[8], ex[9], W[32], W[33])
        yield from self.rdpack(VV[9], ex[10], ex[11], W[34], W[35])
        yield ('set', 'kxread')
        yield lambda: e.wait(lg='s2')
        yield lambda: e.mfma(Pk, AS[0:4], KF[0:4], 0)
        yield lambda: e.mfma(Px, AS[16:20], KF[0:4], 0)
        yield lambda: e.mfma(Pk, AS[4:8], KF[4:8], Pk)
        yield lambda: e.mfma(Px, AS[20:24], KF[4:8], Px)
        yield lambda: e.mfma(Pk, AS[8:12], EF, Pk)
        yield lambda: e.mfma(Px, AS[24:28], EF, Px)
        for d in range(8):
            yield from self.rdpack(VV[d], vv[2 * d], vv[2 * d + 1], W[32 + 2 * (d & 1)], W[33 + 2 * (d & 1)])

        def selx():
            e.ins(f'v_cmp_gt_u32_e64 {sApair}, 32, {vLane}', w=[sApair], r=[vLane])
            e.ins(f'v_cndmask_b32_e64 {VV[8]}, {VV[9]}, {VV[8]}, {sApair}', w=[VV[8]], r=[VV[8], VV[9], sApair])
        yield selx
        yield self.v('v_mov_b32', VV[9], '0x3f80')
        if self.dbg == 'kv':
            yield lambda: None if e.dry else self.dump([KF[d] for d in range(8)] + [EF[d] for d in range(4)] + [VV[d] for d in range(10)])
            return
        for d in range(5):
            yield lambda d=d: e.ds('ds_write_b64', vTw, VV[2 * d:2 * d + 2], off=80 + 8 * d, tag='tw')
        yield self.v('v_mov_b32', W[48], Px[0])
        yield self.v('v_mov_b32', W[49], Px[1])
        yield lambda: e.wait(lg='tw')
        for d in range(8):
            yield from self.rdpack(QF[d], q[2 * d], q[2 * d + 1], W[32 + 2 * (d & 1)], W[33 + 2 * (d & 1)])
        yield ('set', 'qaread')
        yield lambda: e.mfma(Pq, AS[0:4], QF[0:4], 0)
        yield lambda: e.mfma(Px, AS[16:20], QF[0:4], 0)
        yield lambda: e.mfma(Pq, AS[4:8], QF[4:8], Pq)
        yield lambda: e.mfma(Px, AS[20:24], QF[4:8], Px)
        yield lambda: e.mfma(Pq, AS[10:14], EF, Pq)
        yield lambda: e.mfma(Px, AS[26:30], EF, Px)
        yield ('set', 'pqm')
        sm = self.softmax([Pk[d] for d in range(16)] + [W[48], W[49]], [Px[d] for d in range(16)] + [W[52], W[53]],
                          [W[54], W[55], W[60], W[61]], [Pk[d] for d in range(9)], [Px[d] for d in range(9)])
        if self.dbg == 'p':
            yield self.v('v_mov_b32', W[50], Px[0])
            yield self.v('v_mov_b32', W[51], Px[1])
            yield lambda: None if e.dry else self.dump([Pk[d] for d in range(16)] + [W[48], W[49]] + [Pq[d] for d in range(16)] + [W[50], W[51]])
            return
        for n, op in enumerate(sm):
            if n == 31:
                yield self.v('v_mov_b32', W[50], Px[0])
                yield self.v('v_mov_b32', W[51], Px[1])
            yield op
        yield self.v('v_mov_b32', Pk[9], 0)
        yield self.v('v_mov_b32', Px[9], 0)
        for d in range(5):
            yield lambda d=d: e.ds('ds_write_b64', vTw, Pk[2 * d:2 * d + 2], off=8 * d, tag='tw')
            yield lambda d=d: e.ds('ds_write_b64', vTw, Px[2 * d:2 * d + 2], off=40 + 8 * d, tag='tw')
        ka = [YB[3][n] for n in range(7)]
        for n in range(3):
            yield self.v('v_accvgpr_read_b32', ka[n], HPa[40 + n])
        yield ('delay', 2)

        def bar():
            e.wait(lg='tw')
            e.barrier()
        yield bar
        KV = Pk
        for ks in range(8 + 3):
            if ks < 8:
                fa, fb = AS[8 * (ks % 4):8 * (ks % 4) + 4], AS[8 * (ks % 4) + 4:8 * (ks % 4) + 8]
                of = ks * 16 * 240
                yield lambda fa=fa, of=of, ks=ks: e.ds('ds_read_b64_tr_b16', fa[0:2], vTa, off=of, tag=('kv', ks))
                yield lambda fa=fa, of=of, ks=ks: e.ds('ds_read_b64_tr_b16', fa[2:4], vTa, off=of + 960, tag=('kv', ks))
                yield lambda fb=fb, of=of, ks=ks: e.ds('ds_read_b64_tr_b16', fb[0:2], vTb, off=of, tag=('kv', ks))
                yield lambda fb=fb, of=of, ks=ks: e.ds('ds_read_b64_tr_b16', fb[2:4], vTb, off=of + 960, tag=('kv', ks))
            else:
                yield ('delay', 1)
            m = ks - 3
            if m >= 0:
                yield lambda m=m: e.wait(lg=[('kv', m)])
                yield lambda m=m: e.mfma(KV, AS[8 * (m % 4):8 * (m % 4) + 4], AS[8 * (m % 4) + 4:8 * (m % 4) + 8], 0 if m == 0 else KV)
        yield ('set', 'tread')
        yield ('spawn', 'smq', self.th_smq(), self.o['prio'][3])
        yield ('delay', 2)

        def kvst():
            e.ins('s_mov_b64 exec, 0x3ffff', w=['exec'], cls='salu')
            e.bstore('buffer_store_dwordx4', KV[8:12], ka[2], sWS, sA0, flags='sc1', tag='kvst')
            e.ins('s_mov_b32 exec_hi, 0x3ffff', w=['exec'], cls='salu')
            e.bstore('buffer_store_dwordx4', KV[0:4], ka[0], sWS, sA0, flags='sc1', tag='kvst')
            e.bstore('buffer_store_dwordx4', KV[4:8], ka[1], sWS, sA0, flags='sc1', tag='kvst')
            e.ins('s_mov_b64 exec, -1', w=['exec'], cls='salu')
        yield kvst
        yield ('set', 'kvflag')
        t_g = self.stepno
        for n in range(3, 7):
            yield self.v('v_accvgpr_read_b32', ka[n], HPa[40 + n])
        yield ('set', 'gsum')
        yield self.s('s_min_u32', sA0, sI, 14)
        yield self.s('s_lshl_b32', sA0, sA0, 11)
        yield self.s('s_add_u32', sA0, sA0, sA1)
        yield self.s('s_min_u32', sA1, sI, 14)
        yield self.s('s_mul_i32', sA1, sA1, 48)
        yield ('delay', max(1, o['d_kv'] - (self.stepno - t_g)))
        yield ('set', 'kvpolled')
        A_, B_ = YB[3][8:12], YB[3][12:14]

        def gl():
            yield lambda: e.bload('buffer_load_dwordx4', A_, ka[3], sWS, sA0, flags='sc1', tag='kvl')
            yield lambda: e.bload('buffer_load_dwordx2', B_, ka[4], sWS, sA0, off=64, flags='sc1', tag='kvl')

        def sel(d, a_, b_):
            return lambda: e.ins(f'v_cndmask_b32_e64 {d}, {a_}, {b_}, {sApair}', w=[d], r=[a_, b_, sApair])

        def dpp(d, a_, b_, n):
            return lambda: e.ins(f'v_add_f32_dpp {d}, {a_}, {b_} row_ror:{n} row_mask:0xf bank_mask:0xf', w=[d], r=[a_, b_], cls='perm')

        def gsum():
            yield self.s('s_mov_b32', sApair[0], '0xf0f0f0f0')
            yield self.s('s_mov_b32', sApair[1], '0xf0f0f0f0')
            for x_, y_ in ((A_[0], A_[1]), (A_[2], A_[3]), (B_[0], B_[1])):
                yield self.v('v_permlane16_swap_b32', x_, y_)
            for x_, y_ in ((B_[0], B_[1]), (A_[0], A_[1]), (A_[2], A_[3])):
                yield self.v('v_add_f32', x_, x_, y_)
            yield self.v('v_mov_b32', B_[1], B_[0])
            yield self.v('v_permlane32_swap_b32', A_[0], A_[2])
            yield self.v('v_permlane32_swap_b32', B_[0], B_[1])
            yield self.v('v_add_f32', A_[0], A_[0], A_[2])
            yield self.v('v_add_f32', B_[0], B_[0], B_[1])
            yield sel(A_[2], B_[0], A_[0])
            yield sel(A_[1], A_[0], B_[0])
            yield dpp(A_[1], A_[2], A_[1], 4)
            yield dpp(A_[1], A_[1], A_[1], 8)
        yield from gl()
        yield ('delay', o['d_gl'])
        yield lambda: e.wait(vm='kvl')
        yield from gsum()

        def redo_kv():
            for f in gl():
                f()
            e.other('s_waitcnt vmcnt(0)')
            for f in gsum():
                f()
        yield from self.check(lambda: e.ins(f'v_cmp_u_f32_e64 {sApair}, {A_[1]}, {A_[1]}', w=[sApair], r=[A_[1]]), sApair, redo_kv)
        yield self.pack(A_[1], A_[1], A_[1])
        yield lambda: e.bstore('buffer_store_short', A_[1], ka[5], sWS, sA1, flags='sc1', tag='kvst')
        yield ('set', 'kv2')
        yield self.s('s_lshl_b32', sA0, sJ, 12)
        yield self.s('s_add_u32', sA0, sA0, WS_KVF)
        yield ('delay', o['d_kv2'])
        F_ = W[0:4]

        def fl():
            yield lambda: e.bload('buffer_load_dwordx4', F_, ka[6], sWS, sA0, flags='sc1', tag='kvf')

        def fchk():
            yield self.v('v_pk_max_u16', B_[0], F_[0], F_[1])
            yield self.v('v_pk_max_u16', B_[1], F_[2], F_[3])
            yield self.v('v_pk_max_u16', B_[0], B_[0], B_[1])
            yield self.v('v_lshlrev_b32', B_[1], 16, B_[0])
            yield self.v('v_max_u32', B_[0], B_[0], B_[1])
        yield from fl()
        yield ('delay', o['d_gl'])
        yield lambda: e.wait(vm='kvf')
        yield from fchk()

        def redo_f():
            for f in fl():
                f()
            e.other('s_waitcnt vmcnt(0)')
            for f in fchk():
                f()
        yield from self.check(lambda: e.ins(f'v_cmp_le_u32_e64 {sApair}, {sMask}, {B_[0]}', w=[sApair], r=[sMask, B_[0]]), sApair, redo_f)
        yield lambda: e.ds('ds_write_b128', ka[6], F_, off=L_KVS, tag='kvs')
        yield ('until', 'hf2')
        yield ('delay', 2)
        yield ('until', 'pq')

        def bar2():
            e.wait(lg='kvs')
            e.barrier()
        yield bar2
        N, Nx = W[0:16], W[16:32]
        PQ = W[32:52]
        fr = GB
        for t_ in range(5):
            for which, pat in ((0, vKm), (1, vKe)):
                f = fr[2 * t_ + which]
                yield lambda f=f, pat=pat, t_=t_: e.ds('ds_read_b64_tr_b16', f[0:2], pat, off=320 * t_, tag=('nd', t_))
                yield lambda f=f, pat=pat, t_=t_: e.ds('ds_read_b64_tr_b16', f[2:4], pat, off=320 * t_ + 160, tag=('nd', t_))
        yield ('delay', 2)
        for m in range(5):
            yield lambda m=m: e.wait(lg=[('nd', m)])
            yield lambda m=m: e.mfma(Nx, fr[2 * m + 1], PQ[4 * m:4 * m + 4], 0 if m == 0 else Nx)
            yield lambda m=m: e.mfma(N, fr[2 * m], PQ[4 * m:4 * m + 4], 0 if m == 0 else N)
        yield ('set', 'xlow')
        if self.dbg == 'num':
            yield lambda: None if e.dry else self.dump([N[d] for d in range(16)] + [Nx[d] for d in range(4)])
            return
        OF = self.OF
        yield ('until', 'hf2')
        den, t0 = Nx[4], Nx[5]
        yield self.pack(den, 0, Nx[2])
        yield self.v('v_add_f32', den, fh(1e-6), den)
        yield self.pack(den, 0, den)
        yield self.v('v_rcp_f32', t0, den)
        yield self.v('v_mov_b32', OF[10], 0)
        yield self.v('v_fma_f32', den, f'-{den}', t0, 1.0, extra_r=[den])
        yield self.v('v_fma_f32', t0, den, t0, t0)
        yield self.v('v_mov_b32', OF[11], 0)
        nums = [Nx[0], Nx[1]] + [N[d] for d in range(16)]
        for kk in range(9):
            tt = Nx[6 + (kk & 1)]
            a_, b_ = nums[2 * kk], nums[2 * kk + 1]
            yield self.pack(a_, 0, a_)
            yield self.pack(b_, 0, b_)
            yield self.v('v_mul_f32', a_, a_, t0)
            yield self.v('v_mul_f32', b_, b_, t0)
            yield self.pack(OF[8] if kk == 0 else OF[kk - 1], a_, b_)
        yield ('set', 'of')
        yield self.s('s_add_u32', sA0, sHo, 18432)
        yield self.v('v_lshlrev_b32', Nx[8], 2, vLane)
        yield lambda: e.bstore('buffer_store_dwordx4', OF[0:4], vL16, sWS, sA0, off=0, flags='sc1', tag='ost')
        yield lambda: e.bstore('buffer_store_dwordx4', OF[4:8], vL16, sWS, sA0, off=1024, flags='sc1', tag='ost')
        yield lambda: e.bstore('buffer_store_dword', OF[8], Nx[8], sWS, sA0, off=2048, flags='sc1', tag='ost')
        yield self.s('s_add_u32', sA0, sHi, 18432)
        yield ('delay', o['d_o'])

        def old_():
            yield lambda: e.bload('buffer_load_dwordx4', self.OP[0:4], vL16, sWS, sA0, off=0, flags='sc1', tag='old')
            yield lambda: e.bload('buffer_load_dwordx4', self.OP[4:8], vL16, sWS, sA0, off=1024, flags='sc1', tag='old')
            yield lambda: e.bload('buffer_load_dword', OF[9], Nx[8], sWS, sA0, off=2048, flags='sc1', tag='old')

        def ochk():
            OP = self.OP
            yield self.v('v_max3_u32', Nx[10], OP[0], OP[1], OP[2])
            yield self.v('v_max3_u32', Nx[11], OP[3], OP[4], OP[5])
            yield self.v('v_max3_u32', Nx[10], Nx[10], OP[6], OP[7])
            yield self.v('v_max3_u32', Nx[10], Nx[10], Nx[11], OF[9])
        yield ('until', 'hpol0')
        yield from old_()
        yield ('delay', o['d_load'])
        yield lambda: e.wait(vm='old')
        yield from ochk()

        def redo_o():
            for f in old_():
                f()
            e.other('s_waitcnt vmcnt(0)')
            for f in ochk():
                f()
        yield from self.check(lambda: e.ins(f'v_cmp_eq_u32_e64 {sApair}, -1, {Nx[10]}', w=[sApair], r=[Nx[10]]), sApair, redo_o)
        yield ('set', 'op')
        if self.dbg == 'o':
            yield lambda: None if e.dry else self.dump([OF[d] for d in range(12)] + [self.OP[d] for d in range(8)])

    def hflag(self, g, tag, vt, spair):
        e = self.e
        yield ('delay', self.o['d_ack'])
        yield lambda: e.wait(vm=tag)
        yield self.flag(1 + g)
        yield ('delay', self.o['d_vis'])
        yield from self.poll(vW4, sWS, sFp, 4 + 4 * g, vt, spair)

    def th_smq(self):
        Pq, Px = W[32:48], W[16:32]
        yield from self.softmax([Pq[d] for d in range(16)] + [W[50], W[51]], [Px[d] for d in range(16)] + [W[52], W[53]],
                                [W[54], W[55], W[60], W[61]], [W[32 + d] for d in range(9)], [W[41 + d] for d in range(9)])
        yield self.v('v_mov_b32', W[50], 0)
        yield self.v('v_mov_b32', W[51], 0)
        yield ('set', 'pq')

    def th_relu(self, g3):
        e = self.e
        if g3:
            yield ('until', f'hf{g3 - 1}')
        if True:
            yield ('until', f'acc{g3}')
            for t, acc in enumerate(FACC[g3]):
                Ts = HG[g3][0] + t
                if g3 == 0 and t == self.o['rl0']:
                    yield ('prio', self.o['prio'][1][3])
                for d in range(0, 8, 2):
                    yield self.pack(HS[Ts][d], acc[2 * d], acc[2 * d + 1])
                    yield self.pack(HS[Ts][d + 1], acc[2 * d + 2], acc[2 * d + 3])
                    yield self.v('v_pk_max_i16', HS[Ts][d], HS[Ts][d], 0)
                    yield self.v('v_pk_max_i16', HS[Ts][d + 1], HS[Ts][d + 1], 0)
                yield ('set', f'hr{Ts}')
            yield ('set', f'hf{g3}')

    def th_hst(self):
        e = self.e
        yield ('until', 'clr')
        yield ('until', 'clr2')
        for g3 in range(3):
            for Ts in range(*HG[g3]):
                yield ('until', f'hr{Ts}')
                yield self.s('s_add_u32', sR0, sHo, 2048 * Ts)
                for hh in range(2 - self.o.get('hskip', 0)):
                    yield self.paced(lambda Ts=Ts, hh=hh, g3=g3: e.bstore('buffer_store_dwordx4', HS[Ts][4 * hh:4 * hh + 4], vL16, sWS, sR0,
                                                                          off=1024 * hh, flags=self.o['hfl'], tag=('hst', g3)), self.o['st_h'][g3])
            yield ('spawn', f'himp{g3}', self.th_himp(g3), self.o['prio'][4])

    def th_himp(self, g3):
        e = self.e
        yield ('until', 'rdy')
        yield ('until', 'tab2')
        yield ('until', 'pqm')
        yield from self.hflag(g3, [('hst', g3)], W[66 + g3], sHp[g3])
        yield ('set', f'hpol{g3}')
        if g3 >= 1:
            yield ('until', 'gsum')
            yield ('until', 'pf')
        for Ts in range(*HG[g3]):
            yield self.s('s_add_u32', sHs[g3], sHi, 2048 * Ts)
            for hh in range(2):
                yield lambda Ts=Ts, hh=hh: e.bload('buffer_load_dwordx4', HPS[Ts][4 * hh:4 * hh + 4], vL16, sWS, sHs[g3],
                                                   off=1024 * hh, flags=self.o['lfl'], tag=('hld', g3))
                if self.o['hgap']:
                    yield ('delay', self.o['hgap'])
        if self.o['hthr']:
            self.thr = [self.stepno + self.o['hthr'][1], self.o['hthr'][0]]
        yield ('delay', self.o['d_hl'][g3])
        yield lambda: e.wait(vm=[('hld', g3)])
        yield ('set', f'hp{g3}')
        if self.dbg == 'h' and g3 == 2:
            yield ('until', 'hp0')
            yield ('until', 'hp1')
            yield lambda: None if e.dry else self.dump([HS[d // 8][d % 8] for d in range(72)] + [HPS[d // 8][d % 8] for d in range(72)])

    def tab2_pre(self):
        e = self.e
        a, b = W[68], W[69]
        s0, s1 = sZ0, sO0
        pD2, pDO = PKV[4:8], PKV[8:10]
        pU, pPb = PKS[0:4] + [sU[4]], PKS[4:8]
        yield self.v('v_lshrrev_b32', a, 5, vLane)
        yield self.v('v_lshlrev_b32', a, 9, a)
        for t in range(2):
            for h in range(2):
                yield self.v('v_sub_u32', PKV[2 * t + h], vP1[t][h], a)
        yield self.v('v_bfe_u32', a, vLane, 4, 1)
        yield self.v('v_xor_b32', a, sC, a)
        yield self.v('v_lshlrev_b32', a, 2, a)
        yield self.v('v_and_b32', b, 7, vLane)
        yield self.v('v_xor_b32', a, a, b)
        yield self.v('v_lshrrev_b32', b, 3, vLane)
        yield self.v('v_mul_u32_u24', b, 1152, b)
        yield self.v('v_lshl_add_u32', a, a, 4, b)
        yield self.s('s_and_b32', s1, sW, 1)
        yield self.s('s_mul_i32', s1, s1, 16 * 1152)
        yield self.s('s_mul_i32', s0, sC, 32 * 1152)
        yield self.s('s_add_u32', s0, s0, s1)
        yield self.v('v_add_u32', pD2[0], s0, a)
        yield self.v('v_add_u32', pD2[1], 8 * 1152 - 1024, pD2[0])
        yield self.s('s_mul_i32', s0, sC, -32 * 1152)
        yield self.s('s_add_u32', s0, s0, s1)
        yield self.s('s_add_u32', s0, s0, 32 * 1152)
        yield self.v('v_add_u32', pD2[2], s0, a)
        yield self.v('v_add_u32', pD2[3], 8 * 1152 - 1024, pD2[2])
        yield self.s('s_lshr_b32', s0, sW, 1)
        yield self.s('s_xor_b32', s0, s0, sJ)
        yield self.s('s_mul_i32', s0, s0, 36 * 1152)
        yield self.s('s_lshr_b32', s1, s1, 1)
        yield self.s('s_add_u32', s0, s0, s1)
        yield self.v('v_add_u32', pDO[0], s0, a)
        yield self.v('v_add_u32', pDO[1], 20 * 1152 - 1024, pDO[0])
        yield self.s('s_lshr_b32', s0, sJ, 1)
        yield self.s('s_mul_i32', s0, s0, 576 * 1152)
        yield self.s('s_lshr_b32', s1, sW, 1)
        yield self.s('s_add_u32', pU[0], s1, sRg)
        yield self.s('s_add_u32', pU[1], pU[0], 2)
        for p in range(2):
            yield self.s('s_and_b32', pU[p], pU[p], 3)
            yield self.s('s_mul_i32', pU[p], pU[p], 64 * 1152)
            yield self.s('s_add_u32', pU[p], pU[p], s0)
        yield self.s('s_mul_i32', pU[4], sC, -64 * 1152)
        yield self.s('s_add_u32', pU[4], pU[4], 32 * 1152)
        yield self.s('s_mul_i32', pU[4], pU[4], s1)
        yield self.s('s_add_u32', pU[4], pU[4], s0)
        yield self.s('s_add_u32', pU[4], pU[4], 256 * 1152)
        yield self.s('s_mul_i32', s1, sC, 320 * 1152)
        yield self.s('s_sub_u32', s0, 320 * 1152, s1)
        for p in range(2):
            yield self.s('s_add_u32', pU[2 + p], pU[p], s0)
            yield self.s('s_add_u32', pU[p], pU[p], s1)
        yield self.s('s_mul_i32', s1, sC, 640)
        for u in range(4):
            yield self.s('s_add_u32', s0, sR2, u)
            yield self.s('s_and_b32', s0, s0, 3)
            yield self.s('s_lshl_b32', s0, s0, 7)
            yield self.s('s_add_u32', pPb[u], s0, s1)
        yield self.v('v_add_u32', PKV[10], sM1, vL16)
        yield self.v('v_and_b32', b, 15, vLane)
        yield self.v('v_mul_u32_u24', b, 1152, b)
        yield self.v('v_and_b32', a, 48, vLane)
        yield self.v('v_add_u32', PKV[11], a, b)
        yield self.v('v_lshrrev_b32', a, 3, vLane)
        yield self.v('v_add_u32', a, sR2, a)
        yield self.v('v_and_b32', a, 3, a)
        yield self.v('v_lshl_add_u32', a, a, 7, s1)
        yield self.v('v_mov_b32', b, 512)

        def selw():
            e.ins(f'v_cmp_gt_u32 vcc, 32, {vLane}', w=['vcc'], r=[vLane])
            e.v('v_cndmask_b32', a, b, a)
        yield selw
        yield self.v('v_and_b32', b, 7, vLane)
        yield self.s('s_lshl_b32', s0, sC, 2)
        yield self.v('v_xor_b32', b, s0, b)
        yield self.v('v_lshl_add_u32', PKV[12], b, 4, a)
        yield self.s('s_and_b32', s0, sW, 1)
        yield self.s('s_xor_b32', s0, s0, sJ)
        yield self.s('s_mul_i32', s0, s0, 36)
        yield self.s('s_and_b32', s1, sW, 2)
        yield self.s('s_add_u32', s0, s0, s1)
        yield self.s('s_add_u32', s0, s0, 16)
        yield self.s('s_mul_i32', s0, s0, 1152)
        yield self.s('s_add_u32', s1, s0, 1152 - 1024)
        yield self.v('v_bfe_u32', a, vLane, 2, 2)
        yield self.v('v_lshrrev_b32', b, 5, vLane)
        yield self.v('v_lshl_add_u32', a, b, 2, a)
        yield self.v('v_lshlrev_b32', a, 10, a)
        yield self.v('v_bfe_u32', b, vLane, 4, 1)
        yield self.v('v_lshl_add_u32', a, b, 5, a)
        yield self.v('v_and_b32', b, 3, vLane)
        yield self.v('v_lshl_add_u32', a, b, 3, a)
        yield self.v('v_add_u32', PKV[13], L_T, a)

    def th_tab2(self):
        e = self.e
        s0, s1 = sZ0, sO0
        yield ('until', 'qkv')
        for n in range(12):
            yield self.v('v_mov_b32', V(6 + n), PKV[n])
        yield self.v('v_mov_b32', vWe, PKV[12])
        yield self.v('v_mov_b32', vWm, PKV[13])
        yield ('set', 'tab2v')
        for n in range(4):
            yield self.s('s_mov_b32', sU[n], PKS[n])
            yield self.s('s_mov_b32', sPb[n], PKS[4 + n])
        yield self.s('s_mov_b32', sPb[4], 512)
        yield ('set', 'tab2')
        yield ('until', 'tread')
        yield ('until', f'sync{self.synced + 1}')

        def wox():
            e.s('s_add_u32', 'm0', sM2, L_T)
            e.dma(vWe, sWO, s0, tag=('wox', -1))
            e.dma(vWe, sWO, s1, tag=('wox', -1), off=1024)
            if not e.dry:
                self.ev.add('woxi')
        wox.heavy = True
        self.dma_q.append(wox)
        yield ('until', 'woxi')
        self.vWX = vWm
        yield ('delay', 40)
        yield lambda: e.wait(vm=[('wox', -1)])
        yield ('until', f'sync{self.synced + 1}')
        yield ('set', 'wox')

    def odst(self, n):
        return YB[7][8 * (n & 1):8 * (n & 1) + 8] if n < 8 else YB[8][0:8]

    def paced(self, f, c=None):
        f.paced = True
        if c is not None:
            f.stc = c
        return f

    def th_out(self):
        e = self.e
        yield ('until', 'clr3')
        for n in range(9):
            yield ('until', f'tile{n}')
            if 2 <= n < 8:
                yield ('until', f'out{n - 2}')
            acc, D = self.gacc[n], self.odst(n)
            for d in range(8):
                yield from self.rdpack(D[d], acc[2 * d], acc[2 * d + 1], YB[0][12 + 2 * (d & 1)], YB[0][13 + 2 * (d & 1)])
            for h2 in range(2):
                yield self.v('v_permlane32_swap_b32', D[4 * h2], D[4 * h2 + 2])
                yield self.v('v_permlane32_swap_b32', D[4 * h2 + 1], D[4 * h2 + 3])
            yield ('set', f'pk{n}')

    def th_pst(self):
        e = self.e
        for n in range(9):
            yield ('until', f'pk{n}')
            D = self.odst(n)
            for h2 in range(2):
                f = lambda h2=h2, n=n, D=D: e.bstore('buffer_store_dwordx4', D[4 * h2:4 * h2 + 4], vPst, sWS, sPo[n // 4],
                                                     off=1024 * (n % 4) + 512 * h2, flags=self.o['sfl'] if n < 8 else 'sc1', tag=('pst', n // 4))
                yield self.paced(f, self.o['st_p']) if n < self.o['st_pn'] else f
            yield ('set', f'out{n}')


    def th_red(self):
        e = self.e
        o = self.o
        acc = [W[16 * g:16 * g + 16] for g in range(3)]
        buf = [[X[b0 + 4 * n:b0 + 4 * n + 4] for n in range(8)] + [X[128 + 4 * g:132 + 4 * g]] for g, b0 in enumerate((0, 64, 96))]
        ra = [(vRi, vRo), (vRi, vRo), (W[64], W[65])]

        def setup(g):
            sa, sb, sp = sZa[g], sZb[g], sZp[g]
            ri, ro = ra[g]
            yield self.s('s_lshr_b32', sb, sWg, 1)
            yield self.s('s_mul_i32', sb, sb, 16 * 1152)
            if g < 2:
                def colsel():
                    e.s('s_cmp_lt_u32', sW, 2)
                    e.s('s_cselect_b32', sp[0], sPb[2 * g], sPb[2 * g + 1])
                yield colsel
                yield self.s('s_add_u32', sb, sb, sp[0])
                yield self.s('s_xor_b32', sp[0], sW, sC)
                yield self.s('s_and_b32', sp[0], sp[0], 1)
            else:
                yield self.v('v_and_b32', ro, 15, vLane)
                yield self.s('s_lshl_b32', sp[0], sW, 8)
                yield self.v('v_lshl_add_u32', ri, ro, 4, sp[0])
                yield self.v('v_mul_u32_u24', ro, 1152, ro)
                yield self.s('s_lshl_b32', sp[0], sW, 4)
                yield self.s('s_add_u32', sb, sb, sp[0])
                yield self.s('s_add_u32', sb, sb, 512)
                yield self.s('s_mov_b32', sp[0], sC)
            yield self.s('s_lshl_b32', sp[0], sp[0], 6)
            yield self.s('s_add_u32', sb, sb, sp[0])
            yield lambda: e.bload('buffer_load_dwordx4', buf[g][8], ro, sX, sb, tag=('rl', g, 8))
            if g == 0:
                yield self.s('s_lshl_b32', sa, sI, 1)
                yield self.s('s_add_u32', sa, sa, sC)
                yield self.s('s_lshl_b32', sa, sa, 3)
                yield self.s('s_lshr_b32', sp[0], sJ, 1)
                yield self.s('s_add_u32', sa, sa, sp[0])
                yield self.s('s_mul_i32', sa, sa, OWN)
                yield self.s('s_add_u32', sa, sa, WS_PART)
            else:
                yield self.s('s_add_u32', sa, sZa[0], 4096 * g)

        def rl(g):
            for src in range(8):
                yield lambda src=src: e.bload('buffer_load_dwordx4', buf[g][src], ra[g][0], sWS, sZa[g], flags='sc1', tag=('rl', g, src))
                yield self.s('s_add_u32', sZa[g], sZa[g], 9216 if src < 7 else -7 * 9216)

        def summ(g):
            yield lambda: e.wait(vm=[('rl', g, 8)])
            yield lambda: e.mfma(acc[g], PL, buf[g][8], 0)
            for src in range(8):
                yield lambda src=src: e.wait(vm=[('rl', g, src)])
                yield lambda src=src: e.mfma(acc[g], PL, buf[g][src], acc[g])

        def fin(g, gs, ss=None):
            def redo():
                for g_ in gs:
                    for f in rl(g_):
                        f()
                for g_ in (gs if ss is None else ss):
                    for f in summ(g_):
                        f()
                e.wait(vm='all')
            sp = sZp[g]
            if gs:
              yield from self.check(lambda: e.ins(f'v_cmp_u_f32_e64 {sp}, {acc[g][0]}, {acc[g][0]}', w=[sp], r=[acc[g][0]]), sp, redo)
            for d in range(4):
                yield self.pack(acc[g][8 + d], acc[g][2 * d], acc[g][2 * d + 1])
            yield lambda: e.bstore('buffer_store_dwordx4', acc[g][8:12], ra[g][1], sOUT, sZb[g], flags=o['ofl'], tag='out')
            yield ('set', f'red{g}')

        va = W[62]

        def flg(g):
            yield ('until', f'out{4 * g + 3}')
            yield ('delay', o['d_ack'])
            yield lambda: e.wait(vm=[('pst', g)])
            yield self.flag(5 + g)
            yield ('set', f'pflag{g}')

        yield ('until', 'hpol2')
        yield ('until', 'wox')
        yield ('until', 'pq')
        for g in range(3):
            yield from setup(g)
        rs = o['rs']
        if not all(rs):
            sp = sYpair
            yield self.s('s_lshl_b32', sp[0], sI, 4)
            yield self.s('s_add_u32', sp[0], sp[0], sC)
            yield self.s('s_lshl_b32', sp[0], sp[0], 2)
            yield self.s('s_lshr_b32', sp[1], sJ, 2)
            yield self.s('s_add_u32', sp[0], sp[0], sp[1])
            yield self.s('s_lshl_b32', sp[0], sp[0], 6)
            yield self.v('v_and_b32', va, 7, vLane)
            yield self.v('v_lshl_add_u32', va, va, 9, sp[0])
        yield ('prio', 0)
        if o['tm'] == 'S':
            yield ('spawn', 'flg0', flg(0), -1)
            yield ('until', 'cflag')
            yield ('delay', o['d_cf'])
            yield from self.poll(va, sWS, 0, 16, W[63], sZp[0], delay=36)
            yield ('set', 'cpol')
            yield ('until', 'out8')
            yield ('until', 'pflag0')
            pl = self.poll(va, sWS, 0, 20, W[63], sZp[0], delay=1)
            yield next(pl)
            yield from rl(1)
            yield from pl
            yield ('set', 'polled0')
            yield from rl(0)
            if o['t_sl']:
                yield lambda: e.other(f's_sleep {o["t_sl"]}')
            yield from rl(2)
            yield from summ(1)
            yield from fin(1, (1, 2), (1,))
            yield from summ(0)
            yield from fin(0, ())
            yield from summ(2)
            yield from fin(2, (2,))
            return
        for g in range(2):
            if not rs[g]:
                yield ('spawn', f'flg{g}', flg(g), -1)
        if rs[0]:
            yield ('until', 'out3')
            yield ('delay', o['d_r0'])
        else:
            yield ('until', 'pflag0')
            yield ('delay', o['d_vis'])
            if o['r0late']:
                yield ('until', o['r0late'])
            yield from self.poll(va, sWS, 0, 20, W[63], sZp[0])
        yield ('set', 'polled0')
        yield from rl(0)
        yield ('until', 'out8')
        if rs[1]:
            yield from summ(0)
            yield from fin(0, (0,) if rs[0] else ())
            if o['t_sl']:
                yield lambda: e.other(f's_sleep {o["t_sl"]}')
            yield ('set', 'polled1')
            yield from rl(1)
            yield from rl(2)
            yield from summ(1)
            yield from summ(2)
            yield from fin(1, (1, 2))
            yield from fin(2, (2,))
        else:
            yield ('until', 'pflag1')
            if o['tord'] == 0:
                yield from summ(0)
                yield from fin(0, (0,) if rs[0] else ())
            if o['t_sl']:
                yield lambda: e.other(f's_sleep {o["t_sl"]}')
            pl = self.poll(va, sWS, 0, 24, W[63], sZp[1], delay=1)
            yield next(pl)
            if o['tord'] == 2:
                yield from rl(2)
            if o['tord'] >= 1:
                yield from summ(0)
                yield from fin(0, (0,) if rs[0] else ())
            if o['tord'] == 2:
                yield from summ(2)
            yield from pl
            yield ('set', 'polled1')
            yield from rl(1)
            if o['tord'] != 2:
                yield from rl(2)
            else:
                yield from fin(2, (2,))
            yield from summ(1)
            yield from fin(1, ())
            if o['tord'] != 2:
                yield from summ(2)
                yield from fin(2, (2,))

    def build(self):
        e = self.e
        self.prologue()
        if self.dbg == 'xn':
            self.drain_until('normdone')
            self.dump([X[d] for d in range(144)])
            return self.finish()
        pr = self.o['prio']
        self.spawn('attn', self.th_attn(), pr[0])
        for g3 in range(3):
            self.spawn(f'relu{g3}', self.th_relu(g3), pr[1][g3])
        self.spawn('out', self.th_out(), 1)
        self.spawn('hst', self.th_hst(), pr[4])
        self.spawn('pst', self.th_pst(), 0)
        self.spawn('red', self.th_red(), 4)

        self.spawn('rdy', self.th_ready(), -1)

        def late_clr():
            yield ('until', self.o['clr0'])
            yield from self.clr_ops()
        self.spawn('clrs', late_clr(), -1)
        self.spawn('clr', self.th_clr(), -1)
        self.spawn('clr3', self.th_clr3(), 2)
        if self.o['pf'] & 2:
            self.spawn('pf', self.th_pf(), -1)
        else:
            self.ev.add('pf')
        self.spawn('tab2', self.th_tab2(), pr[2])
        self.ta = 0.0
        if self.o['pro_n']:
            self.drain_until(self.o['pro_n'])
            self.stepno = 0
            self.ta = self.st = 0.0
        self.stream()
        if not self.stop:
            self.stamp('end', real=True)
            self.stamp_out()
        if self.o['verbose']:
            print('events:', sorted(self.evstep.items(), key=lambda kv: kv[1])[36:], file=sys.stderr)
            print('look (stage, step, lookahead, inflight):', self.look, file=sys.stderr)
            print('steps', self.stepno, 'insts', e.ninst, 'nops', e.nops, file=sys.stderr)
        return self.finish()

    def finish(self):
        e = self.e
        e.label('L_end')
        e.other('s_endpgm')
        for f in self.slow:
            e.fence_all()
            f()
        hdr = open('cdna_kernels/' + NAME + '.s.ref').read().split('; Override')[0].rstrip('\n')
        hdr = '\n'.join(l[2:] if l.startswith('; ') else l for l in hdr.split('\n'))
        return kernel_file([dict(name=NAME + '_kernel', body=e.text(), grid=(256, 1, 1), block=(256, 1, 1),
                                 lds=LDS_BYTES, vgpr=512, sgpr=102, accum=256)], header_comment=hdr)


if __name__ == '__main__':
    import argparse
    ap = argparse.ArgumentParser()
    ap.add_argument('--dbg', default=None)
    ap.add_argument('--out', default='cdna_kernels/' + NAME + '.s')
    ap.add_argument('--opts', default='{}')
    a = ap.parse_args()
    g = Gen(dbg=a.dbg, opts=eval(a.opts))
    txt = g.build()
    open(a.out, 'w').write(txt)
    print('written', a.out, 'lines', txt.count('\n'), 'nops', g.e.nops, 'stamps', g.stamp_names, g.slow_names)
```
